```python
import torch

def _softmax(x, axis=-1):
    return torch.softmax(x, dim=axis)
def _gelu(x):
    return torch.nn.functional.gelu(x, approximate="tanh")
def _silu(x):
    return torch.nn.functional.silu(x)
def _sigmoid(x):
    return torch.sigmoid(x)
def _layernorm(x, axis=-1, eps=1e-5):
    m = x.mean(dim=axis, keepdim=True)
    v = x.var(dim=axis, keepdim=True, unbiased=False)
    return (x - m) / torch.sqrt(v + eps)
def _scatter_add(tgt, idx, src, axis=0):
    return tgt.clone().index_add_(axis, idx, src)
def _segment_sum(src, seg, n):
    out = torch.zeros((n,) + src.shape[1:], dtype=src.dtype)
    return out.index_add_(0, seg, src)
def _pad(x, pw):
    flat = tuple(v for pair in reversed(pw) for v in pair)
    return torch.nn.functional.pad(x, flat)

kernel_name = 'interleave_layers__spectral_gfnet__sliding_block__prompt'

def setup_inputs():

    _w = (lambda a: (lambda t: t.to(torch.bfloat16) if t.is_floating_point() else t)(torch.as_tensor(a)))
    def _A_setup():
        B, S, D = 1, 2048, 512
        Df = D // 2 + 1
        return {
            "x": _w((lambda *s: torch.randn(*s, dtype=torch.bfloat16) * 0.05)(B, S, D)),
            "w_r": _w((lambda *s: torch.randn(*s, dtype=torch.bfloat16) * 1.6)(S, Df) * 0.02),
            "w_i": _w((lambda *s: torch.randn(*s, dtype=torch.bfloat16) * 1.6)(S, Df) * 0.02),
        }
    _A_in = _A_setup()

    def _B_setup():
        B, S, D = 1, 2048, 512
        return {
            "x": _w((lambda *s: torch.randn(*s, dtype=torch.bfloat16) * 0.05)(B, S, D)),
            "wqkv": _w((lambda *s: torch.randn(*s, dtype=torch.bfloat16) * 0.05)(D, 3 * D)),
            "wo": _w((lambda *s: torch.randn(*s, dtype=torch.bfloat16) * 0.05)(D, D)),
        }
    _B_in = _B_setup()

    return {
        "A_x": _A_in["x"],
        "A_w_r": _A_in["w_r"],
        "A_w_i": _A_in["w_i"],
        "B_x": _B_in["x"],
        "B_wqkv": _B_in["wqkv"],
        "B_wo": _B_in["wo"],
    }

def reference(A_x, A_w_r, A_w_i, B_x, B_wqkv, B_wo):
    def _A_ref(x, w_r, w_i):
        B, S, D = x.shape
        X = (lambda x, axes=(-2,-1): torch.fft.rfft2(x.float(), dim=axes))(x, axes=(-2, -1))
        W = w_r + 1j * w_i
        X = X * W
        y = (lambda x, s, axes=(-2,-1): torch.fft.irfft2(x, s=s, dim=axes).to(torch.bfloat16))(X, (S, D), axes=(-2, -1))
        return y

    def _B_ref(x, wqkv, wo):
        B, S, D = x.shape
        H = 32; Dh = D // H; W = 256
        qkv = (lambda x, *d: x.permute(*d))((x @ wqkv).reshape(B, S, 3, H, Dh), 2, 0, 3, 1, 4)
        q, k, v = qkv[0], qkv[1], qkv[2]
        scores = torch.einsum("bhqd,bhkd->bhqk", q, k) * (Dh ** -0.5)
        idx = torch.arange(S)
        mask = (idx[:, None] - idx[None, :] >= 0) & (idx[:, None] - idx[None, :] < W)
        scores = torch.where(mask[None, None], scores, -1e9)
        p = _softmax(scores, axis=-1)
        o = torch.einsum("bhqk,bhkd->bhqd", p, v)
        return (lambda x, *d: x.permute(*d))(o, 0, 2, 1, 3).reshape(B, S, D) @ wo

    x = A_x
    x = x + _A_ref(_layernorm(x, axis=-1), A_w_r, A_w_i)
    x = x + _B_ref(_layernorm(x, axis=-1), B_wqkv, B_wo)
    x = x + _A_ref(_layernorm(x, axis=-1), A_w_r, A_w_i)
    x = x + _B_ref(_layernorm(x, axis=-1), B_wqkv, B_wo)
    return x
```

```python
import re

TRANS = ("v_exp_f32","v_log_f32","v_rcp_f32","v_rsq_f32","v_sqrt_f32","v_sin_f32","v_cos_f32","v_exp_f16","v_rcp_iflag_f32")
def _regs(tok):
    t = tok.strip()
    t = re.sub(r"^(neg|abs|sext)\((.*)\)$", r"\2", t)
    t = t.lstrip("-").strip("|")
    m = re.match(r"^([vas])(\d+)$", t)
    if m: return [(m.group(1), int(m.group(2)))]
    m = re.match(r"^([vas])\[(\d+):(\d+)\]$", t)
    if m: return [(m.group(1), i) for i in range(int(m.group(2)), int(m.group(3))+1)]
    if t == "vcc": return [("s",106),("s",107)]
    if t == "vcc_lo": return [("s",106)]
    if t == "vcc_hi": return [("s",107)]
    if t == "exec": return [("s",126),("s",127)]
    if t == "m0": return [("s",124)]
    return []

class Ins:
    __slots__ = ("text","op","ops","w","r","kind","passes","srcc","dreg","sdata","label","nstates","is_dpp")
    def __init__(s, text):
        s.text = text
        body = text.split(";")[0].strip()
        s.label = body.endswith(":")
        s.w = []; s.r = []; s.kind = "other"; s.passes = 0; s.srcc = []; s.dreg = []; s.sdata = []; s.nstates = 1; s.is_dpp = False
        if s.label or not body or body.startswith("."):
            s.kind = "label" if s.label else "pseudo"; s.op = ""; s.ops = []; s.nstates = 0
            return
        parts = body.split(None, 1)
        s.op = parts[0]
        rest = parts[1] if len(parts) > 1 else ""
        ops = []; depth = 0; cur = ""
        for ch in rest:
            if ch == "[": depth += 1
            if ch == "]": depth -= 1
            if ch == "," and depth == 0: ops.append(cur.strip()); cur = ""
            else: cur += ch
        if cur.strip(): ops.append(cur.strip())
        mods = ""
        if ops:
            lp = ops[-1].split(None, 1)
            ops[-1] = lp[0]
            if len(lp) > 1: mods = lp[1]
        s.ops = ops
        op = s.op
        R = lambda i: _regs(ops[i]) if i < len(ops) else []
        if op == "s_nop":
            s.kind = "nop"; s.nstates = int(ops[0], 0) + 1
        elif op.startswith("v_mfma"):
            s.kind = "mfma"; s.passes = 8 if "32x32" in op else 4
            s.w = R(0); s.dreg = R(0); s.r = R(1)+R(2)+R(3); s.srcc = R(3)
        elif op.startswith("v_permlane"):
            s.kind = "permlane"; s.w = R(0)+R(1); s.r = R(0)+R(1)
        elif op.startswith("v_readfirstlane") or op.startswith("v_readlane"):
            s.kind = "readlane"; s.w = R(0); s.r = R(1)+R(2)
        elif op.startswith("v_cmp"):
            s.kind = "valu"; s.w = R(0); s.r = R(1)+R(2)
        elif op.startswith("v_"):
            s.kind = "trans" if op.replace("_e32","").replace("_e64","") in TRANS else "valu"
            s.w = R(0); s.r = []
            for i in range(1, len(ops)): s.r += R(i)
            if op.startswith(("v_add_co","v_sub_co","v_addc_co","v_subb_co")):
                s.w = R(0)+R(1); s.r = R(2)+R(3)+R(4)
            if op.startswith(("v_fmac","v_pk_fmac","v_dot2c","v_writelane")): s.r += R(0)
            if "_dpp" in op or "row_" in mods or "quad_perm" in mods:
                s.is_dpp = True; s.r += R(0)
        elif op.startswith(("buffer_load","global_load")):
            s.kind = "vmem"
            if "lds" in mods.split() or op.startswith("global_load_lds"):
                for i in range(len(ops)): s.r += R(i)
                s.r += [("s",124)]
                s.kind = "vmem_lds"
            else:
                s.w = R(0)
                for i in range(1, len(ops)): s.r += R(i)
        elif op.startswith("buffer_store") or op.startswith("buffer_atomic"):
            s.kind = "vmem"
            for i in range(len(ops)): s.r += R(i)
            if "x4" in op or "x3" in op: s.sdata = R(0)
        elif op.startswith("global_store"):
            s.kind = "vmem"
            for i in range(len(ops)): s.r += R(i)
            if "x4" in op or "x3" in op: s.sdata = R(1)
        elif op.startswith("ds_read") or op.startswith("ds_bpermute") or op.startswith("ds_swizzle"):
            s.kind = "ds"; s.w = R(0)
            for i in range(1, len(ops)): s.r += R(i)
        elif op.startswith("ds_write"):
            s.kind = "ds"
            for i in range(len(ops)): s.r += R(i)
        elif op.startswith("s_"):
            s.kind = "salu"
            if op.startswith(("s_cmp","s_cbranch","s_branch","s_waitcnt","s_barrier","s_endpgm","s_sleep","s_setprio","s_bitcmp")):
                for i in range(len(ops)): s.r += R(i)
            else:
                s.w = R(0)
                for i in range(1, len(ops)): s.r += R(i)
                if "saveexec" in op: s.w += [("s",126),("s",127)]
        else:
            raise ValueError("unparsed: " + text)

VALUK = ("valu","trans","permlane","readlane")
def need_states(p, c):
    n = 0
    pw = set(p.w); cr = set(c.r); cw = set(c.w)
    vec = lambda S: {x for x in S if x[0] in "va"}
    sca = lambda S: {x for x in S if x[0] == "s"}
    if p.kind in VALUK:
        ov = vec(pw) & cr
        if ov:
            if c.kind == "mfma": n = max(n, 2)
            if c.kind == "permlane": n = max(n, 2)
            if c.is_dpp: n = max(n, 2)
            if c.kind == "readlane": n = max(n, 1)
            if p.kind == "trans" and c.kind in ("valu","permlane","readlane","mfma"): n = max(n, 1)
        so = sca(pw) & cr
        if so:
            if c.kind in ("valu","trans","permlane"): n = max(n, 2)
            if c.kind == "readlane": n = max(n, 4)
            if c.kind in ("vmem","vmem_lds"): n = max(n, 5)
            if c.kind == "salu": n = max(n, 1)
    if p.op.startswith("v_dot") and (vec(pw) & (cr | cw)):
        if c.op == p.op:
            if vec(pw) & (set(_regs(c.ops[1])) | set(_regs(c.ops[2]))): n = max(n, 3)
        else: n = max(n, 3)
    if p.kind == "mfma":
        big = {4: 8, 8: 12}[p.passes]
        if c.kind == "mfma":
            ab = set(c.r) - set(c.srcc) | (set(_regs(c.ops[1])) | set(_regs(c.ops[2])))
            if pw & (set(_regs(c.ops[1])) | set(_regs(c.ops[2]))): n = max(n, big)
            if pw & set(c.srcc):
                if not (c.srcc == p.dreg and c.passes == p.passes): n = max(n, {4: 6, 8: 10}[p.passes])
            elif pw & cw:
                n = max(n, {4: 6, 8: 10}[p.passes])
        elif c.kind in VALUK + ("vmem","vmem_lds","ds"):
            if pw & (cr | cw): n = max(n, big)
        if c.kind in VALUK and set(p.srcc) & cw: n = max(n, {4: 3, 8: 7}[p.passes])
    if p.sdata and set(p.sdata) & cw:
        n = max(n, 2 if c.kind in VALUK else 1)
    if p.kind == "salu" and ("s",124) in pw and c.kind == "vmem_lds": n = max(n, 1)
    return n

class Prog:
    def __init__(s):
        s.ins = []
        s.uid = 0
        s.nvm = 0
        s.bg = []
        s.bg_every = 60; s.bg_acc = 0; s._inbg = False
    def _cost(s, i):
        if i.kind in ("label","pseudo"): return 0
        if i.kind in ("trans","permlane","mfma"): return 8
        if i.kind == "nop": return 4*i.nstates
        return 4
    def __call__(s, txt):
        for l in txt.strip("\n").split("\n"):
            l = l.strip()
            if not l or l.startswith(";"): continue
            i = Ins(l)
            s.ins.append(i)
            if i.kind in ("vmem","vmem_lds"): s.nvm += 1
            if s.bg and not s._inbg:
                s.bg_acc += s._cost(i)
                if s.bg_acc >= s.bg_every and i.kind in ("valu","trans","mfma","ds","permlane") and not i.op.startswith("v_cmp"):
                    s.bg_acc = 0; s.bg_pop()
    def bg_pop(s):
        s._inbg = True; s(s.bg.pop(0)); s._inbg = False
    def bg_flush(s):
        while s.bg: s.bg_pop()
    def mark(s): return s.nvm
    def wait_vm(s, mark):
        n = s.nvm - mark
        assert 0 <= n <= 63, n
        s._inbg, old = True, s._inbg
        s(f"s_waitcnt vmcnt({n})"); s._inbg = old
    def label(s, name): s.ins.append(Ins(name + ":"))
    def newlabel(s, base="L"):
        s.uid += 1; return f"{base}_{s.uid}"
    def finalize(s):
        out = []
        nins = 0
        for c in s.ins:
            if c.kind in ("label","pseudo"):
                out.append(c); continue
            need = 0; dist = 0
            for p in reversed(out):
                if p.kind in ("label","pseudo"): continue
                if dist >= 12: break
                if p.op in ("s_branch","s_endpgm"): break
                k = need_states(p, c)
                if k > dist: need = max(need, k - dist)
                dist += p.nstates
            if need > 0:
                out.append(Ins(f"s_nop {need-1}")); nins += need
            out.append(c)
        s.nops_inserted = nins
        return "\n".join((i.text if i.kind == "label" or i.text.startswith(".") else "    " + i.text) for i in out) + "\n"

class RegAlloc:
    def __init__(s, n, prefix, reserved=()):
        s.n = n; s.p = prefix; s.used = [False]*n; s.hi = 0; s.names = {}
        for r in reserved: s.used[r] = True
    def alloc(s, cnt=1, align=None, name=None):
        if align is None: align = 1 if cnt == 1 else 2
        for b in range(0, s.n - cnt + 1, align):
            if not any(s.used[b:b+cnt]):
                for i in range(b, b+cnt): s.used[i] = True
                s.hi = max(s.hi, b+cnt)
                return b
        raise RuntimeError(f"out of {s.p} registers for {cnt} ({name}); used={sum(s.used)}")
    def free(s, b, cnt=1):
        for i in range(b, b+cnt):
            assert s.used[i], (s.p, i)
            s.used[i] = False
    def nfree(s): return s.n - sum(s.used)
```

```python
import numpy as np, math

def f2bf(x):
    u = np.atleast_1d(np.asarray(x, dtype=np.float32)).view(np.uint32).astype(np.int64)
    r = (u + 0x7FFF + ((u >> 16) & 1)) >> 16
    return r.astype(np.uint16).reshape(np.shape(x))
def bf2f(u):
    return (np.asarray(u, dtype=np.uint16).astype(np.uint32) << 16).view(np.float32)

def col_j(c):
    b, q = divmod(c, 16)
    if b == 0:
        if q == 0: return 256
        return 32*q if q < 8 else 16 + 32*(q-8)
    return b + 32*q if q < 8 else 512 - b - 32*q
CJ = [col_j(c) for c in range(256)]
JC = {j: c for c, j in enumerate(CJ)}
assert sorted(CJ) == list(range(1, 257))

def fullF():
    d = np.arange(512)
    F = np.zeros((512, 512))
    for c in range(256):
        j = CJ[c]
        if c == 0:
            F[:,0] = 1/math.sqrt(512); F[:,1] = np.cos(np.pi*d)/math.sqrt(512)
        else:
            F[:,2*c] = math.sqrt(2/512)*np.cos(2*np.pi*j*d/512)
            F[:,2*c+1] = -math.sqrt(2/512)*np.sin(2*np.pi*j*d/512)
    return F

def stage1_mat():
    M = np.zeros((16,2,32)); d1 = np.arange(32)
    M[0,0] = 1.0; M[0,1] = np.cos(np.pi*d1)
    for b in range(1,16):
        M[b,0] = np.cos(2*np.pi*b*d1/32); M[b,1] = -np.sin(2*np.pi*b*d1/32)
    return M
def stage2_mat():
    M = np.zeros((16,32,2,16)); d2 = np.arange(16); s = math.sqrt(2/512)
    for b in range(16):
        for q in range(16):
            if b == 0:
                if q == 0:
                    M[0,0,0] = 1/math.sqrt(512); M[0,1,0] = np.cos(np.pi*d2)/math.sqrt(512)
                else:
                    J = CJ[q]; cin = 0 if q < 8 else 1
                    th = 2*np.pi*J*d2/512
                    M[0,2*q,cin] = s*np.cos(th); M[0,2*q+1,cin] = -s*np.sin(th)
            else:
                J = b + 32*q; th = 2*np.pi*J*d2/512
                sg = 1.0 if q < 8 else -1.0
                M[b,2*q,0] = s*np.cos(th); M[b,2*q,1] = s*np.sin(th)
                M[b,2*q+1,0] = -sg*s*np.sin(th); M[b,2*q+1,1] = sg*s*np.cos(th)
    return M
def check_fact():
    M1 = stage1_mat(); M2 = stage2_mat()
    Fe = np.einsum("bocx,bcy->yxbo", M2, M1).reshape(512, 512)
    return np.abs(Fe - fullF()).max()

def T1():
    M1 = stage1_mat(); T = np.zeros((2,64,8))
    for t in range(2):
        for l in range(64):
            m, g = l % 16, l // 16
            b, c = 8*t + 2*(m//4) + (m%4)//2, m % 2
            T[t,l] = M1[b,c,8*g:8*g+8]
    return f2bf(T)
def T2():
    M2 = stage2_mat(); T = np.zeros((16,2,64,8))
    for b in range(16):
        for t in range(2):
            for l in range(64):
                k, g = l % 16, l // 16
                o = 8*(k//4) + 4*t + k % 4
                T[b,t,l] = M2[b,o,g//2,8*(g%2):8*(g%2)+8]
    return f2bf(T)
def F1():
    T = np.zeros((4,2,2,64,8))
    for w in range(4):
        for u in range(2):
            for l in range(64):
                a = 16*w + l % 16; bb = 32*u + 8*(l//16) + np.arange(8)
                th = 2*np.pi*((a*bb) % 64)/64
                T[w,0,u,l] = np.cos(th); T[w,1,u,l] = np.sin(th)
    return f2bf(T)
def F2():
    T = np.zeros((2,2,64,8))
    for t in range(2):
        for t2 in range(2):
            for l in range(64):
                a = 16*t + l % 16; bb = 16*t2 + 4*(l//16) + np.arange(4)
                th = 2*np.pi*((a*bb) % 32)/32
                T[t,t2,l,:4] = np.cos(th); T[t,t2,l,4:] = np.sin(th)
    return f2bf(T)
def JCtab():
    return np.array([JC[j]*8192 for j in range(1,257)], dtype=np.uint32)
def CJtab():
    return np.array(CJ, dtype=np.uint16)

if __name__ == "__main__":
    print("factorization err", check_fact())
```

```python
import sys, math
import numpy as np
from asmlib import Prog, RegAlloc
import tables as TB

KNAME = "interleave_layers__spectral_gfnet__sliding_block__prompt_kernel"
FLAGS = 0x0000000
ST0   = 0x0010000
DBGT  = 0x0020000
XH0   = 0x0200000
WQ    = 0x0400000
WOP   = 0x0580000
GT    = 0x0600000
WT    = 0x0700000
CLR1  = 0x0A00000
XH1   = CLR1
O1    = CLR1 + 0x200000
XH2   = CLR1 + 0x400000
KV1   = CLR1 + 0x600000
ST2   = CLR1 + 0xA00000
CLR2  = 0x1500000
XH3   = CLR2
O2    = CLR2 + 0x200000
KV2   = CLR2 + 0x400000
WSEND = CLR2 + 0x800000
L_XT  = 0
L_WL  = 65536
L_F2  = 131072
L_IMG = L_F2 + 4096
L_EXC = L_IMG + 8192
L_RS  = L_EXC + 9216
L_VO  = L_RS + 256
L_X3  = L_IMG
LDS_BYTES = 163840
L_EX1 = 0
L_IM1 = 16384
A_WQ = 0; A_TW1 = 192; A_TW3 = 208; A_W = 224; A_F1 = 240
S_X, S_WR, S_WI, S_BX, S_WQKV, S_WO, S_OUT, S_DBG, S_WS = 4, 6, 8, 10, 12, 14, 16, 18, 20
SW, SIN, SA, SB, SD = 24, 28, 32, 36, 40
S_TAB = 44
S_W, S_RB, S_HG, S_NONCE = 46, 47, 48, 49
S_T0, S_T1, S_T2, S_T3, S_T4, S_T5 = 50, 51, 52, 53, 54, 55
S_SELLO, S_SELHI, S_CMASK, S_SPIN = 56, 57, 58, 59
S_EX = 60
S_BG = 62
S_BG2 = 63
S_BG3 = 22
S_KV = 23
S_TS = 64
QSCALE = 0.25*math.log2(math.e)

def f32hex(x): return "0x%08x" % int(np.float32(x).view(np.uint32))
def srd(r): return f"s[{r}:{r+3}]"
def vr(b, n=1): return f"v{b}" if n == 1 else f"v[{b}:{b+n-1}]"
def ar(b, n=1): return f"a{b}" if n == 1 else f"a[{b}:{b+n-1}]"

class Gen:
    def __init__(s, stop=None, timing=False, **opt):
        s.opt = opt
        s.p = Prog(); s.stop = stop; s.timing = timing
        s.V = RegAlloc(256, "v", reserved=[0,1,2,3])
        s.nts = 0
        s.slow = []
    def stamp(s):
        if s.timing:
            assert s.nts < 32
            old = s.p._inbg; s.p._inbg = True
            s.p(f"s_waitcnt lgkmcnt(0)\ns_memtime s[98:99]\ns_waitcnt lgkmcnt(0)\ns_mov_b32 s{S_TS+s.nts}, s98")
            s.p._inbg = old
            s.nts += 1
    def mksrd(s, r, base, off, size):
        p = s.p
        if off:
            p(f"s_add_u32 s{r}, s{base}, {off}\ns_addc_u32 s{r+1}, s{base+1}, 0")
        else:
            p(f"s_mov_b32 s{r}, s{base}\ns_mov_b32 s{r+1}, s{base+1}")
        p(f"s_mov_b32 s{r+2}, {size}\ns_mov_b32 s{r+3}, 0x20000")
    def finish(s):
        p = s.p
        if s.timing:
            t = s.V.alloc(2)
            p(f"s_lshl_b32 s{S_T0}, s2, 9\ns_lshl_b32 s{S_T1}, s{S_W}, 7\ns_add_u32 s{S_T0}, s{S_T0}, s{S_T1}\ns_add_u32 s{S_T0}, s{S_T0}, {DBGT}")
            p(f"v_mov_b32 v{t}, 0\ns_mov_b64 exec, 1")
            for i in range(s.nts):
                p(f"v_mov_b32 v{t+1}, s{S_TS+i}\nbuffer_store_dword v{t+1}, v{t}, {srd(SW)}, s{S_T0} offen offset:{4*i}")
            p(f"s_memrealtime s[98:99]\ns_lshl_b32 s{S_T0}, s2, 6\ns_lshl_b32 s{S_T1}, s{S_W}, 4\ns_add_u32 s{S_T0}, s{S_T0}, s{S_T1}\ns_add_u32 s{S_T0}, s{S_T0}, {DBGT+131072}\ns_waitcnt lgkmcnt(0)")
            p(f"v_mov_b32 v{t+1}, s96\nbuffer_store_dword v{t+1}, v{t}, {srd(SW)}, s{S_T0} offen\nv_mov_b32 v{t+1}, s98\nbuffer_store_dword v{t+1}, v{t}, {srd(SW)}, s{S_T0} offen offset:4\nv_mov_b32 v{t+1}, s100\nbuffer_store_dword v{t+1}, v{t}, {srd(SW)}, s{S_T0} offen offset:8")
            s.V.free(t, 2)
        p("s_waitcnt vmcnt(0)\ns_endpgm")

    def prologue(s):
        p, V = s.p, s.V
        p(f"""
        s_cmp_ge_u32 s2, 256
        s_cbranch_scc1 L_end
        s_load_dwordx16 s[4:19], s[0:1], 0
        s_load_dwordx2 s[20:21], s[0:1], 64
        s_getpc_b64 s[{S_TAB}:{S_TAB+1}]
        """)
        p.label("L_pc")
        if s.timing: p(f"s_memtime s[{S_TS}:{S_TS+1}]\ns_memrealtime s[96:97]"); s.nts = 1
        p(f"""
        v_and_b32 v1, 63, v0
        v_lshrrev_b32 v3, 6, v0
        v_and_b32 v2, 15, v0
        v_readfirstlane_b32 s{S_W}, v3
        v_bfe_u32 v3, v0, 4, 2
        s_bfe_u32 s{S_RB}, s2, 0x20001
        s_lshl_b32 s{S_RB}, s{S_RB}, 3
        s_lshr_b32 s{S_T0}, s2, 5
        s_add_u32 s{S_RB}, s{S_RB}, s{S_T0}       ; rb = ((wg%8)/2)*8 + wg/32
        s_and_b32 s{S_HG}, s2, 1
        s_lshl_b32 s{S_HG}, s{S_HG}, 2
        s_bfe_u32 s{S_T0}, s2, 0x20003
        s_add_u32 s{S_HG}, s{S_HG}, s{S_T0}       ; hg = (wg%2)*4 + (wg/8)%4
        s_mov_b32 s100, 0
        """)
        s.vt16 = V.alloc(1)
        p(f"v_lshlrev_b32 v{s.vt16}, 4, v0")
        s.vl16 = V.alloc(1)
        p(f"v_lshlrev_b32 v{s.vl16}, 4, v1")

    def cos8(s, dst, f, step, tmp, mult=None, n=8):
        p = s.p
        for j in range(n):
            p(f"v_cos_f32 v{tmp+j}, v{f}")
            if j < n-1: p(f"v_add_f32 v{f}, v{f}, v{step}")
        if mult:
            for j in range(n): p(f"v_mul_f32 v{tmp+j}, {mult}, v{tmp+j}")
        for q in range(n//2): p(f"v_cvt_pk_bf16_f32 v{dst+q}, v{tmp+2*q}, v{tmp+2*q+1}")

    def P1(s):
        p, V = s.p, s.V
        L = V.alloc(32, 4); FR = V.alloc(32, 4); T1 = V.alloc(4, 4); T2 = V.alloc(32, 4)
        WTr = V.alloc(8); WTi = V.alloc(8); va = V.alloc(1); vb = V.alloc(1); vc = V.alloc(1); PF = V.alloc(4,4)
        tf = V.alloc(8)
        sc = math.sqrt(2/512)
        p(f"""
        s_and_b32 s{S_T4}, s{S_W}, 1            ; t
        s_lshr_b32 s{S_T5}, s{S_W}, 1           ; e
        v_lshrrev_b32 v{vb}, 1, v1              ; l/2 = pi(d1)
        v_and_b32 v{vc}, 0x13, v{vb}
        v_bfe_u32 v{va}, v{vb}, 2, 1
        v_lshl_or_b32 v{vc}, v{va}, 3, v{vc}
        v_bfe_u32 v{va}, v{vb}, 3, 1
        v_lshl_or_b32 v{vc}, v{va}, 2, v{vc}    ; d1
        v_mul_u32_u24 v{vb}, 49152, v{vc}
        v_and_b32 v{vc}, 1, v0
        v_lshl_add_u32 v{vb}, v{vc}, 4, v{vb}   ; d1*16*3072 + (l%2)*16
        s_sub_u32 s{S_T0}, s2, 128              ; ct
        s_mul_i32 s{S_T1}, s{S_T0}, 43691
        s_lshr_b32 s{S_T1}, s{S_T1}, 17         ; h = ct/3
        s_mul_i32 s{S_T2}, s{S_T1}, 3
        s_sub_u32 s{S_T2}, s{S_T0}, s{S_T2}     ; part
        s_lshl_b32 s{S_T3}, s{S_T2}, 10
        s_lshl_b32 s{S_T1}, s{S_T1}, 5
        s_add_u32 s{S_T3}, s{S_T3}, s{S_T1}     ; n0*2 bytes
        s_mul_i32 s{S_T1}, s{S_W}, 12288
        s_add_u32 s{S_T3}, s{S_T3}, s{S_T1}     ; + d2 = 4w rows
        s_sub_u32 s{S_T0}, s2, 224
        s_cmp_lt_u32 s2, 128
        s_cselect_b32 s{S_T0}, s2, s{S_T0}
        s_lshl_b32 s{S_T0}, s{S_T0}, 14
        s_lshl_b32 s{S_T1}, s{S_W}, 12
        s_add_u32 s{S_T0}, s{S_T0}, s{S_T1}
        s_mul_i32 s{S_T2}, s{S_W}, 4160
        s_add_u32 s{S_T2}, s{S_T2}, {L_IM1}
        s_add_u32 s{S_T1}, s{S_T1}, {L_IM1}
        s_mov_b32 s{SIN+3}, 0x20000
        s_mov_b32 s{SIN+2}, 2097152
        s_cmp_lt_u32 s2, 128
        s_waitcnt lgkmcnt(0)
        s_mov_b32 s{SIN}, s{S_X}
        s_mov_b32 s{SIN+1}, s{S_X+1}
        s_cbranch_scc1 L_p1_ldrows
        s_cmp_lt_u32 s2, 224
        s_cbranch_scc1 L_p1_ldq
        s_mov_b32 s{SIN}, s{S_WO}
        s_mov_b32 s{SIN+1}, s{S_WO+1}
        s_mov_b32 s{SIN+2}, 524288
        """)
        p.label("L_p1_ldrows")
        for i in range(4):
            p(f"s_add_u32 m0, s{S_T2}, {16*i}\ns_nop 0\nbuffer_load_dwordx4 v{s.vl16}, {srd(SIN)}, s{S_T0} offen offset:{1024*i} lds")
        p("s_branch L_p1_ld2")
        p.label("L_p1_ldq")
        p(f"s_mov_b32 s{SIN}, s{S_WQKV}\ns_mov_b32 s{SIN+1}, s{S_WQKV+1}\ns_mov_b32 s{SIN+2}, 1572864")
        for i in range(4):
            p(f"s_add_u32 m0, s{S_T1}, {1024*i}\ns_nop 0\nbuffer_load_dwordx4 v{vb}, {srd(SIN)}, s{S_T3} offen lds")
            if i < 3: p(f"s_add_u32 s{S_T3}, s{S_T3}, 3072")
        p.label("L_p1_ld2")
        s.stamp()
        s.npf = 1
        p(f"""
        s_bfe_u32 s{S_T0}, s2, 0x30003
        s_lshl_b32 s{S_T0}, s{S_T0}, 12
        s_mov_b32 s{SA}, s{S_TAB}
        s_mov_b32 s{SA+1}, s{S_TAB+1}
        s_mov_b32 s{SA+2}, L_end-L_pc
        s_mov_b32 s{SA+3}, 0x20000
        buffer_load_dwordx4 {vr(PF,4)}, v{s.vt16}, {srd(SA)}, s{S_T0} offen
        """)
        s.mksrd(SW, S_WS, 0, WSEND)
        s.mksrd(SD, S_DBG, 0, 256)
        p(f"""
        s_or_b32 s{S_T0}, s2, s{S_W}
        s_cmp_lg_u32 s{S_T0}, 0
        s_cbranch_scc1 L_p1_nononce
        s_memrealtime s[{S_EX}:{S_EX+1}]
        s_waitcnt lgkmcnt(0)
        s_or_b32 s{S_T0}, s{S_EX}, 1
        v_mov_b32 v{va}, s{S_T0}
        v_mov_b32 v{vc}, 0
        s_mov_b64 exec, 1
        buffer_store_dword v{va}, v{vc}, {srd(SD)}, 0 offen sc1
        s_mov_b64 exec, -1
        """)
        p.label("L_p1_nononce")
        d, f, ph, mu = V.alloc(1), V.alloc(1), V.alloc(1), V.alloc(1)
        p(f"""
        v_lshrrev_b32 v{d}, 1, v2
        s_lshl_b32 s{S_T0}, s{S_T4}, 3
        v_add_u32 v{d}, s{S_T0}, v{d}              ; b = 8t + m/2
        v_and_b32 v{ph}, 1, v2                     ; c
        v_cmp_eq_u32 vcc, 0, v{d}
        v_lshlrev_b32 v{f}, 4, v{ph}
        v_cndmask_b32 v{d}, v{d}, v{f}, vcc        ; b==0 -> 16c
        v_cndmask_b32 v{ph}, v{ph}, 0, vcc
        v_cvt_f32_u32 v{d}, v{d}
        v_cvt_f32_u32 v{ph}, v{ph}
        v_mul_f32 v{d}, {f32hex(1/32)}, v{d}
        v_mul_f32 v{ph}, {f32hex(0.25)}, v{ph}
        v_lshlrev_b32 v{f}, 3, v3
        v_cvt_f32_u32 v{f}, v{f}
        v_fma_f32 v{f}, v{f}, v{d}, v{ph}
        s_mov_b32 s{S_T0}, {f32hex(sc)}
        """)
        s.cos8(T1, f, d, tf, mult=f"s{S_T0}")
        q32, d20 = V.alloc(1), V.alloc(1)
        p(f"""
        v_lshrrev_b32 v{q32}, 2, v2
        v_lshlrev_b32 v{q32}, 2, v{q32}
        v_bfe_u32 v{f}, v2, 1, 1
        v_add_u32 v{q32}, v{q32}, v{f}             ; q(t=0)
        v_lshlrev_b32 v{q32}, 5, v{q32}            ; 32 q
        v_and_b32 v{d20}, 1, v3
        v_lshlrev_b32 v{d20}, 3, v{d20}
        v_cvt_f32_u32 v{d20}, v{d20}               ; d2 base
        v_lshrrev_b32 v{tf}, 1, v3                 ; cin
        v_lshrrev_b32 v{tf+1}, 3, v2               ; neg (k>=8)
        v_lshlrev_b32 v{tf+2}, 1, v{tf+1}          ; 1-sg
        v_sub_u32 v{tf+3}, 1, v{tf+2}              ; sg
        v_cmp_eq_u32 vcc, 1, v{tf}
        v_cndmask_b32 v{tf+3}, v{tf+3}, v{tf+2}, vcc
        v_sub_u32 v{tf+2}, 0, v{tf}
        v_and_b32 v{tf+4}, 1, v2                   ; oc
        v_cmp_eq_u32 vcc, 1, v{tf+4}
        v_cndmask_b32 v{ph}, v{tf+2}, v{tf+3}, vcc
        v_cvt_f32_i32 v{ph}, v{ph}
        v_mul_f32 v{ph}, {f32hex(0.25)}, v{ph}
        s_lshl_b32 s{S_T0}, s{S_W}, 2
        s_mov_b32 s{S_T1}, {f32hex(1/512)}
        """)
        for be in (1, 2, 3, 0):
            for t in range(2):
                p(f"""
                s_add_u32 s{S_T2}, s{S_T0}, {be + 64*t}
                v_add_u32 v{d}, s{S_T2}, v{q32}
                """)
                if be == 0:
                    lab = p.newlabel("L_t2b0")
                    p(f"v_mov_b32 v{mu}, 1.0\ns_cmp_lg_u32 s{S_W}, 0\ns_cbranch_scc1 {lab}")
                    p(f"""
                    v_lshrrev_b32 v{tf}, 3, v2
                    v_mul_u32_u24 v{tf+1}, 240, v{tf}
                    v_sub_u32 v{d}, v{d}, v{tf+1}
                    v_lshrrev_b32 v{tf+1}, 1, v3
                    v_cmp_eq_u32 vcc, v{tf}, v{tf+1}
                    v_cndmask_b32 v{mu}, 0, v{mu}, vcc
                    v_and_b32 v{tf}, 1, v2
                    v_cvt_f32_u32 v{ph}, v{tf}
                    v_mul_f32 v{ph}, {f32hex(0.25)}, v{ph}
                    """)
                    if t == 0:
                        p(f"""
                        v_cmp_gt_u32 vcc, 2, v2
                        v_lshlrev_b32 v{tf}, 8, v{tf}
                        v_cndmask_b32 v{d}, v{d}, v{tf}, vcc
                        v_cndmask_b32 v{ph}, v{ph}, 0, vcc
                        v_mul_f32 v{tf}, {f32hex(math.sqrt(0.5))}, v{mu}
                        v_cndmask_b32 v{mu}, v{mu}, v{tf}, vcc
                        """)
                    p.label(lab)
                p(f"""
                v_cvt_f32_u32 v{d}, v{d}
                v_mul_f32 v{d}, s{S_T1}, v{d}
                v_fma_f32 v{f}, v{d20}, v{d}, v{ph}
                """)
                s.cos8(T2+8*be+4*t, f, d, tf, mult=(f"v{mu}" if be == 0 else None))
        V.free(q32); V.free(d20); V.free(mu); V.free(ph)
        jc = V.alloc(1)
        p(f"""
        s_lshr_b32 s{S_T0}, s2, 6
        s_lshl_b32 s{S_T0}, s{S_T0}, 6
        s_lshl_b32 s{S_T1}, s{S_W}, 4
        s_add_u32 s{S_T0}, s{S_T0}, s{S_T1}
        s_add_u32 s{S_T0}, s{S_T0}, 1
        v_add_u32 v{tf}, s{S_T0}, v2              ; j
        v_and_b32 v{tf+1}, 31, v{tf}              ; rho
        v_lshrrev_b32 v{tf}, 5, v{tf}             ; kappa
        v_lshl_add_u32 v{jc}, v{tf+1}, 4, v{tf}
        v_sub_u32 v{tf+2}, 527, v{jc}             ; 16(32-rho)+15-kappa
        v_cmp_lt_u32 vcc, 16, v{tf+1}
        v_cndmask_b32 v{jc}, v{jc}, v{tf+2}, vcc
        v_add_u32 v{tf+2}, 8, v{tf}
        v_cmp_eq_u32 vcc, 16, v{tf+1}
        v_cndmask_b32 v{jc}, v{jc}, v{tf+2}, vcc
        v_and_b32 v{tf+2}, 7, v{tf}
        v_cmp_eq_u32 vcc, 0, v{tf+1}
        v_cndmask_b32 v{jc}, v{jc}, v{tf+2}, vcc
        v_lshlrev_b32 v{jc}, 13, v{jc}
        v_lshl_add_u32 v{jc}, v3, 4, v{jc}
        s_mov_b32 s{S_T1}, 131584
        v_mul_lo_u32 v{vc}, v3, s{S_T1}
        v_lshl_add_u32 v{vc}, v2, 1, v{vc}
        s_lshl_b32 s{S_T3}, s{S_T0}, 1
        s_and_b32 s{S_T0}, s2, 63               ; k1
        s_mul_i32 s{S_T0}, s{S_T0}, 514
        s_add_u32 s{S_T3}, s{S_T3}, s{S_T0}
        """)
        s.mksrd(SA, S_WR, 0, 1052672); s.mksrd(SB, S_WI, 0, 1052672)
        a_exw = V.alloc(1); a_tr = V.alloc(1); a_rd = V.alloc(1)
        p(f"""
        s_lshl_b32 s{S_T0}, s{S_T4}, 13
        s_lshl_b32 s{S_T1}, s{S_T5}, 8
        s_add_u32 s{S_T0}, s{S_T0}, s{S_T1}
        v_lshlrev_b32 v{a_exw}, 11, v3
        v_lshl_add_u32 v{a_exw}, v2, 4, v{a_exw}
        v_add_u32 v{a_exw}, s{S_T0}, v{a_exw}
        ; tr base: IM1 + e*8192 + pos(d1=8g+r)*32 + cidx*8 ; pos = 16(g/2) + 4(g%2) + r (+8 for phi)
        v_lshrrev_b32 v{tf}, 1, v3
        v_lshlrev_b32 v{tf}, 4, v{tf}
        v_and_b32 v{tf+1}, 1, v3
        v_lshl_add_u32 v{tf}, v{tf+1}, 2, v{tf}
        v_lshrrev_b32 v{tf+1}, 2, v2
        v_add_u32 v{tf}, v{tf}, v{tf+1}
        v_lshlrev_b32 v{a_tr}, 5, v{tf}
        v_and_b32 v{tf}, 3, v0
        v_lshl_add_u32 v{a_tr}, v{tf}, 3, v{a_tr}
        s_lshl_b32 s{S_T1}, s{S_T5}, 13
        s_add_u32 s{S_T1}, s{S_T1}, {L_IM1}
        v_add_u32 v{a_tr}, s{S_T1}, v{a_tr}
        v_mul_u32_u24 v{a_rd}, 1040, v2
        v_lshl_add_u32 v{a_rd}, v3, 8, v{a_rd}
        s_lshl_b32 s{S_T1}, s{S_T5}, 4
        s_add_u32 s{S_T1}, s{S_T1}, {L_IM1}
        v_add_u32 v{a_rd}, s{S_T1}, v{a_rd}
        s_mov_b32 s{S_SELLO}, 0x05040100
        s_mov_b32 s{S_SELHI}, 0x07060302
        """)
        M1 = PF
        s.stamp()
        p(f"s_waitcnt vmcnt(0)\ns_barrier")
        s.stamp()
        p(f"""
        s_cmp_lt_u32 s2, 128
        s_cbranch_scc1 L_p1_rd
        s_cmp_ge_u32 s2, 224
        s_cbranch_scc1 L_p1_rd
        """)
        for x in range(8):
            for ph_ in range(2):
                p(f"ds_read_b64_tr_b16 {vr(FR+4*x+2*ph_,2)}, v{a_tr} offset:{ph_*256+x*1024}")
        p("s_branch L_p1_w")
        p.label("L_p1_rd")
        for jj in range(8):
            p(f"ds_read_b128 {vr(L+4*jj,4)}, v{a_rd} offset:{32*jj}")
        p.label("L_p1_w")
        for t in range(2):
            for i in range(4):
                p(f"buffer_load_ushort v{WTr+4*t+i}, v{vc}, {srd(SA)}, s{S_T3} offen")
                p(f"buffer_load_ushort v{WTi+4*t+i}, v{vc}, {srd(SB)}, s{S_T3} offen")
                if i < 3: p(f"s_add_u32 s{S_T3}, s{S_T3}, 32896")
                elif t == 0: p(f"s_add_u32 s{S_T3}, s{S_T3}, {13*32896}")
        for i in range(4): p(f"v_mov_b32 v{M1+i}, -1")
        p(f"s_lshl_b32 s{S_T0}, s2, 13\ns_add_u32 s{S_T0}, s{S_T0}, {XH1}\ns_add_u32 s{S_T1}, s{S_T0}, 4096")
        for i in range(2):
            p(f"buffer_store_dwordx4 {vr(M1,4)}, v{s.vt16}, {srd(SW)}, s{S_T0+i} offen sc1")
        n_clears = 2
        p(f"""
        s_waitcnt lgkmcnt(0)
        s_cmp_lt_u32 s2, 128
        s_cbranch_scc1 L_p1_perm
        s_cmp_lt_u32 s2, 224
        s_cbranch_scc1 L_p1_s1
        """)
        p.label("L_p1_perm")
        for x in range(8):
            for q in range(4):
                p(f"v_perm_b32 v{FR+4*x+q}, v{L+4*(2*q+1)+x//2}, v{L+4*(2*q)+x//2}, s{S_SELLO if x%2==0 else S_SELHI}")
        p.label("L_p1_s1")
        D = L
        for x in range(8):
            p(f"v_mfma_f32_16x16x32_bf16 {vr(D+4*x,4)}, {vr(T1,4)}, {vr(FR+4*x,4)}, 0")
        for i in range(4):
            for q in range(4):
                p(f"v_cvt_pk_bf16_f32 v{FR+4*i+q}, v{D+4*(2*q)+i}, v{D+4*(2*q+1)+i}")
            p(f"ds_write_b128 v{a_exw}, {vr(FR+4*i,4)} offset:{(i//2)*1024+(i%2)*512}")
        p(f"""
        s_lshl_b32 s{S_T0}, s{S_W}, 12
        v_add_u32 v{a_tr}, s{S_T0}, v{s.vl16}
        s_waitcnt lgkmcnt(0)
        s_barrier
        """)
        for be in range(4):
            p(f"ds_read_b128 {vr(FR+16+4*be,4)}, v{a_tr} offset:{1024*be}")
        p(f"s_cmp_lt_u32 s2, 128\ns_cbranch_scc1 L_p1_s2x")
        for be in range(4):
            p(f"s_waitcnt lgkmcnt({3-be})")
            for t in range(2):
                p(f"v_mfma_f32_16x16x32_bf16 {vr(D+8*be+4*t,4)}, {vr(T2+8*be+4*t,4)}, {vr(FR+16+4*be,4)}, 0")
        p(f"""
        s_cmp_ge_u32 s2, 224
        s_cbranch_scc1 L_p1_wo
        s_sub_u32 s{S_T0}, s2, 128
        s_mul_i32 s{S_T1}, s{S_T0}, 43691
        s_lshr_b32 s{S_T1}, s{S_T1}, 17
        s_mul_i32 s{S_T1}, s{S_T1}, 3
        s_cmp_eq_u32 s{S_T1}, s{S_T0}
        s_cselect_b32 s{S_T2}, {f32hex(QSCALE)}, 1.0
        s_lshl_b32 s{S_T0}, s{S_T0}, 14
        s_lshl_b32 s{S_T1}, s{S_W}, 12
        s_add_u32 s{S_T0}, s{S_T0}, s{S_T1}
        s_add_u32 s{S_T0}, s{S_T0}, {WQ}
        s_cmp_eq_u32 s{S_W}, 0
        s_cselect_b32 s{S_T3}, 16, 0
        v_cmp_gt_u32 vcc, s{S_T3}, v1
        v_cndmask_b32 v{D}, v{D}, 0, vcc
        """)
        for be in range(4):
            for i in range(8): p(f"v_mul_f32 v{D+8*be+i}, s{S_T2}, v{D+8*be+i}")
            for q in range(4): p(f"v_cvt_pk_bf16_f32 v{FR+4*be+q}, v{D+8*be+2*q}, v{D+8*be+2*q+1}")
            p(f"buffer_store_dwordx4 {vr(FR+4*be,4)}, v{s.vl16}, {srd(SW)}, s{S_T0} offen offset:{1024*be} sc1")
        p("s_branch L_p1_tail")
        p.label("L_p1_wo")
        p(f"""
        v_lshrrev_b32 v{tf}, 1, v2
        v_and_b32 v{tf}, 3, v{tf}                  ; f5
        v_lshrrev_b32 v{tf+1}, 1, v3
        v_xor_b32 v{tf}, v{tf}, v{tf+1}
        v_lshlrev_b32 v{tf}, 5, v{tf}
        v_lshl_add_u32 v{tf}, v2, 7, v{tf}
        v_and_b32 v{tf+1}, 1, v3
        v_lshl_add_u32 v{tf}, v{tf+1}, 4, v{tf}
        v_xor_b32 v{tf+1}, 64, v{tf}
        s_sub_u32 s{S_T0}, s2, 224
        s_lshl_b32 s{S_T0}, s{S_T0}, 11
        s_lshl_b32 s{S_T1}, s{S_W}, 17
        s_add_u32 s{S_T0}, s{S_T0}, s{S_T1}
        s_add_u32 s{S_T0}, s{S_T0}, {WOP}
        s_add_u32 s{S_T1}, s{S_T0}, 65536
        """)
        for be in range(4):
            for q in range(4): p(f"v_cvt_pk_bf16_f32 v{FR+4*be+q}, v{D+8*be+2*q}, v{D+8*be+2*q+1}")
            p(f"buffer_store_dwordx4 {vr(FR+4*be,4)}, v{tf+be%2}, {srd(SW)}, s{S_T0+be//2} offen sc1")
        p("s_branch L_p1_tail")
        p.label("L_p1_s2x")
        p(f"""
        v_lshrrev_b32 v{tf}, 2, v2
        v_lshlrev_b32 v{tf}, 2, v{tf}              ; 4(k/4)
        v_and_b32 v{tf+1}, 1, v3
        v_lshl_add_u32 v{tf}, v{tf+1}, 1, v{tf}
        v_bfe_u32 v{tf+1}, v2, 1, 1
        v_add_u32 v{tf}, v{tf}, v{tf+1}            ; o/2
        v_lshlrev_b32 v{tf}, 13, v{tf}
        v_and_b32 v{tf+1}, 1, v2
        v_lshl_add_u32 v{tf}, v{tf+1}, 5, v{tf}
        v_lshrrev_b32 v{tf+1}, 1, v3
        v_lshl_add_u32 v{tf}, v{tf+1}, 4, v{tf}
        s_lshl_b32 s{S_T0}, s{S_W}, 19
        s_lshl_b32 s{S_T1}, s2, 6
        s_add_u32 s{S_T0}, s{S_T0}, s{S_T1}
        s_add_u32 s{S_T0}, s{S_T0}, {XH0}
        """)
        for be in range(4):
            p(f"s_waitcnt lgkmcnt({3-be})")
            for t in range(2):
                p(f"v_mfma_f32_16x16x32_bf16 {vr(D+8*be+4*t,4)}, {vr(FR+16+4*be,4)}, {vr(T2+8*be+4*t,4)}, 0")
        for be in range(4):
            for t in range(2):
                for q in range(2): p(f"v_cvt_pk_bf16_f32 v{FR+4*be+2*t+q}, v{D+8*be+4*t+2*q}, v{D+8*be+4*t+2*q+1}")
            p(f"v_permlane16_swap_b32 v{FR+4*be}, v{FR+4*be+2}\nv_permlane16_swap_b32 v{FR+4*be+1}, v{FR+4*be+3}")
            p(f"buffer_store_dwordx4 {vr(FR+4*be,4)}, v{tf}, {srd(SW)}, s{S_T0} offen sc1")
            if be < 3: p(f"s_add_u32 s{S_T0}, s{S_T0}, 131072")
        p(f"""
        s_cmp_eq_u32 s{S_W}, 0
        s_cselect_b32 s{S_T3}, 1, 0
        v_cmp_gt_u32 vcc, s{S_T3}, v2
        """)
        for i in range(4): p(f"v_cndmask_b32 v{D+i}, v{D+i}, 0, vcc")
        AC = FR + 16
        for pr in range(2):
            for i in range(4):
                srcs = [D+16*pr+4*z+i for z in range(4)]
                p(f"v_mul_f32 v{AC+4*pr+i}, v{srcs[0]}, v{srcs[0]}")
                for z in srcs[1:]: p(f"v_fmac_f32 v{AC+4*pr+i}, v{z}, v{z}")
        for sh in (8,4,2,1):
            for i in range(8): p(f"v_add_f32_dpp v{AC+i}, v{AC+i}, v{AC+i} row_ror:{sh} row_mask:0xf bank_mask:0xf")
        PK = FR + 24
        for q in range(4): p(f"v_cvt_pk_bf16_f32 v{PK+q}, v{AC+2*q}, v{AC+2*q+1}")
        p(f"""
        v_permlane16_swap_b32 v{PK}, v{PK+2}
        v_permlane16_swap_b32 v{PK+1}, v{PK+3}
        v_and_b32 v{tf}, 1, v3
        v_lshlrev_b32 v{tf}, 12, v{tf}
        v_lshrrev_b32 v{tf+1}, 1, v3
        v_lshl_add_u32 v{tf}, v{tf+1}, 4, v{tf}
        s_lshl_b32 s{S_T0}, s{S_W}, 13
        s_lshl_b32 s{S_T1}, s2, 5
        s_add_u32 s{S_T0}, s{S_T0}, s{S_T1}
        s_add_u32 s{S_T0}, s{S_T0}, {ST0}
        s_mov_b32 s{S_EX}, 0x00010001
        s_mov_b32 s{S_EX+1}, 0x00010001
        s_mov_b64 exec, s[{S_EX}:{S_EX+1}]
        buffer_store_dwordx4 {vr(PK,4)}, v{tf}, {srd(SW)}, s{S_T0} offen sc1
        s_mov_b64 exec, -1
        """)
        p.label("L_p1_tail")
        s.stamp()
        p(f"v_mov_b32 v{tf+1}, 0\nbuffer_load_dword v{tf}, v{tf+1}, {srd(SD)}, 0 offen sc1")
        p(f"s_waitcnt vmcnt({n_clears+4+1})")
        for i in range(8): p(f"v_lshl_or_b32 v{WTr+i}, v{WTi+i}, 16, v{WTr+i}")
        p(f"""
        s_and_b32 s{S_T0}, s2, 63
        s_lshl_b32 s{S_T0}, s{S_T0}, 7
        s_add_u32 s{S_T0}, s{S_T0}, {WT}
        buffer_store_dwordx4 {vr(WTr,4)}, v{jc}, {srd(SW)}, s{S_T0} offen sc1
        buffer_store_dwordx4 {vr(WTr+4,4)}, v{jc}, {srd(SW)}, s{S_T0} offen offset:64 sc1
        """)
        s.stamp()
        s.gen_TW(tf+2)
        p(f"s_mov_b32 s{S_SPIN}, 0\ns_waitcnt vmcnt(0)")
        p.label("L_nonce")
        p(f"""
        v_readfirstlane_b32 s{S_NONCE}, v{tf}
        s_cmp_lg_u32 s{S_NONCE}, 0
        s_cbranch_scc1 L_nonce_ok
        buffer_load_dword v{tf}, v{tf+1}, {srd(SD)}, 0 offen sc1
        s_add_u32 s{S_SPIN}, s{S_SPIN}, 1
        s_cmp_gt_u32 s{S_SPIN}, 0x100000
        s_cbranch_scc1 L_end
        s_waitcnt vmcnt(0)
        s_branch L_nonce
        """)
        p.label("L_nonce_ok")
        p("s_barrier")
        s.stamp()
        p(f"""
        s_cmp_lg_u32 s{S_W}, 0
        s_cbranch_scc1 L_nosig
        s_lshl_b32 s{S_T0}, s2, 6
        v_mov_b32 v{tf}, s{S_NONCE}
        s_mov_b64 exec, 1
        buffer_store_dword v{tf}, v{tf+1}, {srd(SW)}, s{S_T0} offen sc1
        s_mov_b64 exec, -1
        """)
        p.label("L_nosig")
        for r, n in ((L,32),(FR,32),(T1,4),(T2,32),(WTr,8),(WTi,8),(va,1),(vb,1),(vc,1),(PF,4),(tf,8),(d,1),(f,1),(jc,1),(a_exw,1),(a_tr,1),(a_rd,1)):
            V.free(r, n)

    def gen_TW(s, tf):
        p = s.p
        p(f"""
        s_lshl_b32 s{S_T0}, s{S_W}, 4
        v_add_u32 v{tf}, s{S_T0}, v2
        v_cvt_f32_u32 v{tf}, v{tf}
        v_mul_f32 v{tf}, {f32hex(1/2048)}, v{tf}     ; step
        v_lshlrev_b32 v{tf+1}, 2, v3
        v_cvt_f32_u32 v{tf+1}, v{tf+1}
        v_mul_f32 v{tf+1}, v{tf+1}, v{tf}            ; f(0,0)
        """)
        for t in range(2):
            for i in range(4):
                p(f"""v_cos_f32 v{tf+2}, v{tf+1}
                v_sin_f32_e64 v{tf+3}, -v{tf+1}""")
                if i < 3: p(f"v_add_f32 v{tf+1}, v{tf+1}, v{tf}")
                elif t == 0: p(f"v_mov_b32 v{tf+4}, {f32hex(13.0)}\nv_fma_f32 v{tf+1}, v{tf+4}, v{tf}, v{tf+1}")
                p(f"""v_accvgpr_write_b32 a{A_TW1+4*t+i}, v{tf+2}
                v_accvgpr_write_b32 a{A_TW1+8+4*t+i}, v{tf+3}""")
        p(f"s_mov_b32 s{S_T1}, {f32hex(1/2048)}")
        for t in range(2):
            p(f"""
            v_add_u32 v{tf}, {16*t}, v2
            v_cvt_f32_u32 v{tf}, v{tf}
            v_mul_f32 v{tf}, s{S_T1}, v{tf}
            v_lshl_add_u32 v{tf+1}, v3, 2, s{S_T0}
            v_cvt_f32_u32 v{tf+1}, v{tf+1}
            v_mul_f32 v{tf+1}, v{tf+1}, v{tf}
            """)
            for i in range(4):
                p(f"""v_cos_f32 v{tf+2}, v{tf+1}
                v_sin_f32_e64 v{tf+3}, -v{tf+1}""")
                if i < 3: p(f"v_add_f32 v{tf+1}, v{tf+1}, v{tf}")
                p(f"""v_mul_f32 v{tf+2}, s{S_T1}, v{tf+2}
                v_mul_f32 v{tf+3}, s{S_T1}, v{tf+3}
                v_accvgpr_write_b32 a{A_TW3+4*t+i}, v{tf+2}
                v_accvgpr_write_b32 a{A_TW3+8+4*t+i}, v{tf+3}""")

    def gen_F12G(s):
        p, V = s.p, s.V
        tf = V.alloc(8); d = V.alloc(1); f = V.alloc(1); pk = V.alloc(4, 4); f0 = V.alloc(1)
        p(f"""
        s_lshl_b32 s{S_T0}, s{S_W}, 4
        v_add_u32 v{d}, s{S_T0}, v2
        v_cvt_f32_u32 v{d}, v{d}
        v_mul_f32 v{d}, {f32hex(1/64)}, v{d}
        v_lshlrev_b32 v{f0}, 3, v3
        v_cvt_f32_u32 v{f0}, v{f0}
        v_mul_f32 v{f0}, v{f0}, v{d}
        """)
        for cs in range(2):
            for u in range(2):
                p(f"v_mov_b32 v{tf}, {f32hex(32.0*u)}\nv_fma_f32 v{f}, v{tf}, v{d}, v{f0}")
                if cs: p(f"v_add_f32 v{f}, {f32hex(-0.25)}, v{f}")
                s.cos8(pk, f, d, tf)
                for q in range(4): p(f"v_accvgpr_write_b32 a{A_F1+8*cs+4*u+q}, v{pk+q}")
        p(f"""
        s_lshr_b32 s{S_T0}, s{S_W}, 1
        s_lshl_b32 s{S_T0}, s{S_T0}, 4
        v_add_u32 v{d}, s{S_T0}, v2
        v_cvt_f32_u32 v{d}, v{d}
        v_mul_f32 v{d}, {f32hex(1/32)}, v{d}
        s_and_b32 s{S_T0}, s{S_W}, 1
        s_lshl_b32 s{S_T0}, s{S_T0}, 4
        v_lshl_add_u32 v{f0}, v3, 2, s{S_T0}
        v_cvt_f32_u32 v{f0}, v{f0}
        v_mul_f32 v{f}, v{f0}, v{d}
        v_add_f32 v{f0}, {f32hex(-0.25)}, v{f}
        """)
        s.cos8(pk, f, d, tf, n=4); s.cos8(pk+2, f0, d, tf, n=4)
        p(f"v_add_u32 v{f}, {L_F2}, v{s.vt16}\nds_write_b128 v{f}, {vr(pk,4)}")
        G = V.alloc(4, 4); gj = d; gd = f; gs = f0
        sc = math.sqrt(2/512)
        p(f"""
        s_cmp_ge_u32 s{S_W}, 2
        s_cbranch_scc1 L_p1_nog
        s_and_b32 s{S_T0}, s2, 7
        s_lshl_b32 s{S_T0}, s{S_T0}, 1
        s_add_u32 s{S_T0}, s{S_T0}, s{S_W}          ; b
        s_lshr_b32 s{S_T1}, s2, 3                   ; dt
        s_lshl_b32 s{S_T2}, s{S_T1}, 4
        v_add_u32 v{gd}, s{S_T2}, v2                ; d
        v_lshl_add_u32 v{gj}, v3, 7, s{S_T0}        ; J0 = b + 128 g
        s_cmp_eq_u32 s{S_T0}, 0
        s_cselect_b32 s{S_T2}, -240, 0
        s_mov_b32 s{S_T3}, {f32hex(sc)}
        s_cselect_b32 s{S_T3}, {f32hex(-sc)}, s{S_T3}
        v_cmp_lt_u32 vcc, 1, v3
        v_mov_b32 v{gs}, {f32hex(-sc)}
        v_mov_b32 v{tf}, s{S_T3}
        v_cndmask_b32 v{gs}, v{gs}, v{tf}, vcc
        v_mov_b32 v{tf}, s{S_T2}
        v_cndmask_b32 v{tf}, 0, v{tf}, vcc
        v_add_u32 v{gj}, v{gj}, v{tf}
        s_mov_b32 s{S_T2}, {f32hex(sc)}
        """)
        for x in range(4):
            p(f"""
            v_mul_u32_u24 v{tf}, v{gj}, v{gd}
            v_and_b32 v{tf}, 511, v{tf}
            v_cvt_f32_u32 v{tf}, v{tf}
            v_mul_f32 v{tf}, {f32hex(1/512)}, v{tf}
            v_cos_f32 v{tf+1}, v{tf}
            v_sin_f32 v{tf+2}, v{tf}
            v_mul_f32 v{tf+1}, s{S_T2}, v{tf+1}
            v_mul_f32 v{tf+2}, v{gs}, v{tf+2}
            v_cvt_pk_bf16_f32 v{G+x}, v{tf+1}, v{tf+2}
            """)
            if x < 3: p(f"v_add_u32 v{gj}, 32, v{gj}")
        s0b = int(TB.f2bf(1/math.sqrt(512)))
        p(f"""
        s_cmp_lg_u32 s{S_T0}, 0
        s_cbranch_scc1 L_p1_gst
        v_and_b32 v{tf}, 1, v{gd}
        v_lshlrev_b32 v{tf}, 31, v{tf}
        v_or_b32 v{tf}, {hex(s0b | (s0b << 16))}, v{tf}
        v_cmp_eq_u32 vcc, 0, v3
        v_cndmask_b32 v{G}, v{G}, v{tf}, vcc
        """)
        p.label("L_p1_gst")
        p(f"""
        s_lshl_b32 s{S_T1}, s{S_T1}, 4
        s_add_u32 s{S_T1}, s{S_T1}, s{S_T0}
        s_lshl_b32 s{S_T1}, s{S_T1}, 10
        s_add_u32 s{S_T1}, s{S_T1}, {GT}
        buffer_store_dwordx4 {vr(G,4)}, v{s.vl16}, {srd(SW)}, s{S_T1} offen sc1
        """)
        p.label("L_p1_nog")
        for r, n in ((tf,8),(d,1),(f,1),(pk,4),(f0,1),(G,4)): V.free(r, n)

    def sync1_poll(s):
        p, V = s.p, s.V
        t = V.alloc(2)
        p(f"v_lshlrev_b32 v{t}, 6, v0\ns_mov_b32 s{S_SPIN}, 0")
        p.label("L_poll")
        p(f"""
        buffer_load_dword v{t+1}, v{t}, {srd(SW)}, 0 offen sc1
        s_add_u32 s{S_SPIN}, s{S_SPIN}, 1
        s_cmp_gt_u32 s{S_SPIN}, 0x100000
        s_cbranch_scc1 L_end
        s_waitcnt vmcnt(0)
        v_cmp_ne_u32 vcc, s{S_NONCE}, v{t+1}
        s_cbranch_vccnz L_poll
        s_barrier
        """)
        V.free(t, 2)

    def validate(s, firsts, reissue, tmp):
        p = s.p
        ok = p.newlabel("L_ok"); slow = p.newlabel("L_slow")
        def chk():
            fs = list(firsts)
            if len(fs) == 1: p(f"v_cmp_eq_u32 vcc, -1, v{fs[0]}"); return
            if len(fs) == 2: p(f"v_max_u32 v{tmp}, v{fs[0]}, v{fs[1]}")
            else: p(f"v_max3_u32 v{tmp}, v{fs[0]}, v{fs[1]}, v{fs[2]}")
            fs = fs[3:] if len(fs) > 2 else []
            while len(fs) >= 2:
                p(f"v_max3_u32 v{tmp}, v{tmp}, v{fs[0]}, v{fs[1]}"); fs = fs[2:]
            if fs: p(f"v_max_u32 v{tmp}, v{tmp}, v{fs[0]}")
            p(f"v_cmp_eq_u32 vcc, -1, v{tmp}")
        old = p._inbg; p._inbg = True
        chk()
        p(f"s_cbranch_vccnz {slow}")
        p.label(ok)
        p._inbg = old
        def emit_slow():
            p.label(slow)
            p(f"s_mov_b32 s{S_SPIN}, 0")
            lp = p.newlabel("L_lp"); p.label(lp)
            p(f"s_add_u32 s{S_SPIN}, s{S_SPIN}, 1\ns_cmp_gt_u32 s{S_SPIN}, 0x40000\ns_cbranch_scc1 L_end")
            if s.timing: p("s_add_u32 s100, s100, 1")
            reissue()
            p("s_waitcnt vmcnt(0)")
            chk()
            p(f"s_cbranch_vccnz {lp}\ns_branch {ok}")
        s.slow.append(emit_slow)

    def cmul(s, a, b, c, d, t, conj=False):
        p = s.p
        for q in range(0, 8, 2):
            tt = t + (q & 2)*0
            p(f"v_pk_mul_f32 {vr(t,2)}, {vr(b+q,2)}, {vr(d+q,2)}")
            p(f"v_pk_mul_f32 {vr(t+2,2)}, {vr(a+q,2)}, {vr(d+q,2)}")
            p(f"v_pk_fma_f32 {vr(a+q,2)}, {vr(a+q,2)}, {vr(c+q,2)}, {vr(t,2)} neg_lo:[0,0,1] neg_hi:[0,0,1]")
            neg = " neg_lo:[1,0,1] neg_hi:[1,0,1]" if conj else ""
            p(f"v_pk_fma_f32 {vr(b+q,2)}, {vr(b+q,2)}, {vr(c+q,2)}, {vr(t+2,2)}{neg}")

    def P2(s, layer):
        p, V = s.p, s.V
        XIN, STI, XOUT = (XH0, ST0, XH1) if layer == 0 else (XH2, ST2, XH3)
        RAW = V.alloc(8, 4); ST = V.alloc(32, 4); C = V.alloc(16, 2); R = V.alloc(8, 2)
        TW = V.alloc(16, 2); W = V.alloc(16, 2); FW = V.alloc(24, 2); NS = V.alloc(8, 4)
        D = V.alloc(16, 4); PK = V.alloc(8, 4); T = V.alloc(4, 2)
        a_in = V.alloc(1); a_st = V.alloc(1); a_w = V.alloc(1); a_t0 = V.alloc(1); a_t1 = V.alloc(1); a_xw = V.alloc(1); a_xr = V.alloc(1)
        p(f"""
        s_lshl_b32 s{S_T0}, s{S_W}, 4
        v_add_u32 v{T}, s{S_T0}, v2                 ; n1
        v_lshlrev_b32 v{a_st}, 6, v{T}
        v_lshl_add_u32 v{a_st}, v3, 4, v{a_st}      ; n1*64 + g*16
        v_lshlrev_b32 v{a_in}, 7, v{T}
        v_lshrrev_b32 v{T+1}, 1, v3
        v_lshl_add_u32 v{a_in}, v{T+1}, 6, v{a_in}
        v_and_b32 v{T+1}, 1, v3
        v_lshl_add_u32 v{a_in}, v{T+1}, 4, v{a_in}
        s_cmp_eq_u32 s2, 0
        s_cselect_b32 s{S_CMASK}, 0, -1
        s_cselect_b32 s{S_T1}, 32, 0
        s_lshl_b32 s{S_T2}, s2, 13
        s_add_u32 s{S_T4}, s{S_T2}, {XIN}
        s_add_u32 s{S_T4}, s{S_T4}, s{S_T1}
        s_xor_b32 s{S_T5}, s{S_T4}, 32
        """)
        def loads():
            p(f"buffer_load_dwordx4 {vr(RAW,4)}, v{a_in}, {srd(SW)}, s{S_T4} offen sc1")
            p(f"buffer_load_dwordx4 {vr(RAW+4,4)}, v{a_in}, {srd(SW)}, s{S_T5} offen sc1")
            p(f"s_mov_b32 s{S_T3}, {STI}")
            for h in range(8):
                p(f"buffer_load_dwordx4 {vr(ST+4*h,4)}, v{a_st}, {srd(SW)}, s{S_T3} offen sc1")
                if h < 7: p(f"s_add_u32 s{S_T3}, s{S_T3}, 4096")
        if layer == 0: s.sync1_poll()
        else: p("s_waitcnt vmcnt(0)")
        s.stamp()
        m0 = p.mark()
        loads()
        if layer == 0:
            p(f"""
            v_lshlrev_b32 v{T+1}, 7, v{T}
            v_lshl_add_u32 v{T+1}, v3, 4, v{T+1}
            s_add_u32 s{S_T2}, s{S_T2}, {WT}
            buffer_load_dwordx4 {vr(D,4)}, v{T+1}, {srd(SW)}, s{S_T2} offen sc1
            buffer_load_dwordx4 {vr(D+4,4)}, v{T+1}, {srd(SW)}, s{S_T2} offen offset:64 sc1
            """)
        mW = p.mark()
        p(f"v_add_u32 v{T+1}, {L_F2}, v{s.vl16}")
        for k in range(4): p(f"ds_read_b128 {vr(FW+6*k+2,4)}, v{T+1} offset:{1024*k}")
        p(f"""
        v_bfe_u32 v{T+1}, v2, 1, 2
        v_bfe_u32 v{T+2}, v2, 3, 1
        v_lshlrev_b32 v{T+2}, 1, v{T+2}
        v_xor_b32 v{T+1}, v{T+1}, v{T+2}            ; sigma(n1)
        v_xor_b32 v{T+1}, v{T+1}, v3
        v_lshlrev_b32 v{a_w}, 6, v{T}
        v_lshl_add_u32 v{a_w}, v{T+1}, 4, v{a_w}
        v_add_u32 v{a_w}, {L_IMG}, v{a_w}
        v_lshrrev_b32 v{T+1}, 2, v2                 ; r
        v_lshl_add_u32 v{T+2}, v3, 3, v{T+1}        ; 8g + r
        v_lshlrev_b32 v{a_t0}, 6, v{T+2}
        v_lshrrev_b32 v{T+1}, 1, v{T+1}             ; r>>1
        v_bfe_u32 v{T+2}, v0, 1, 1                  ; cidx/2
        v_xor_b32 v{T+1}, v{T+1}, v{T+2}
        v_and_b32 v{T+2}, 1, v3
        v_lshl_or_b32 v{T+1}, v{T+2}, 1, v{T+1}
        v_lshl_add_u32 v{a_t0}, v{T+1}, 4, v{a_t0}
        v_and_b32 v{T+1}, 1, v0
        v_lshl_add_u32 v{a_t0}, v{T+1}, 3, v{a_t0}
        v_add_u32 v{a_t0}, {L_IMG}, v{a_t0}
        v_xor_b32 v{a_t1}, 32, v{a_t0}
        v_mul_u32_u24 v{a_xw}, 144, v2
        v_lshl_add_u32 v{a_xw}, v3, 3, v{a_xw}
        s_lshl_b32 s{S_T0}, s{S_W}, 5
        s_add_u32 s{S_T0}, s{S_T0}, {L_EXC}
        v_add_u32 v{a_xw}, s{S_T0}, v{a_xw}
        v_lshrrev_b32 v{T+1}, 2, v2
        v_lshlrev_b32 v{T+1}, 3, v{T+1}
        v_and_b32 v{T+2}, 3, v2
        v_add_u32 v{T+1}, v{T+1}, v{T+2}
        v_mul_u32_u24 v{a_xr}, 144, v{T+1}
        v_lshl_add_u32 v{a_xr}, v3, 4, v{a_xr}
        v_add_u32 v{a_xr}, {L_EXC}, v{a_xr}
        s_mov_b32 s{S_T0}, 0x80008000
        s_mov_b32 s{S_SELLO}, 0x00003b00
        s_mov_b32 s{S_SELHI}, 0x3b000000
        """)
        for i in range(16): p(f"v_accvgpr_read_b32 v{TW+i}, a{A_TW1+i}")
        for i in range(8): p(f"v_accvgpr_read_b32 v{NS+i}, a{A_F1+8+i}")
        for i in range(8): p(f"v_xor_b32 v{NS+i}, s{S_T0}, v{NS+i}")
        if layer == 1:
            for i in range(16): p(f"v_accvgpr_read_b32 v{W+i}, a{A_W+i}")
        for i in range(8): p(f"v_mov_b32 v{R+i}, {f32hex(1e-5)}")
        p("s_waitcnt lgkmcnt(0)")
        for k in range(4):
            for q in range(2): p(f"v_xor_b32 v{FW+6*k+q}, s{S_T0}, v{FW+6*k+4+q}")
        def unpack():
            for q in range(4):
                p(f"v_lshlrev_b32 v{C+2*q}, 16, v{RAW+q}\nv_and_b32 v{C+2*q+1}, 0xffff0000, v{RAW+q}")
            for q in range(4):
                p(f"v_xor_b32 v{T}, s{S_T0}, v{RAW+4+q}\nv_lshlrev_b32 v{C+8+2*q}, 16, v{T}\nv_and_b32 v{C+8+2*q+1}, 0xffff0000, v{T}")
        def acc(h):
            for q in range(4):
                p(f"v_dot2_f32_bf16 v{R+2*q}, v{ST+4*h+q}, s{S_SELLO}, v{R+2*q}\nv_dot2_f32_bf16 v{R+2*q+1}, v{ST+4*h+q}, s{S_SELHI}, v{R+2*q+1}")
        if layer == 0:
            p.wait_vm(m0+2); unpack()
            for h in range(8):
                p.wait_vm(m0+3+h); acc(h)
        else:
            p.wait_vm(m0+10)
            s.validate([RAW, RAW+4] + [ST+4*h for h in range(8)], loads, T)
            unpack()
            for h in range(8): acc(h)
        s.stamp()
        if layer == 0:
            M1 = V.alloc(4, 4)
            for i in range(4): p(f"v_mov_b32 v{M1+i}, -1")
            p(f"s_lshl_b32 s{S_BG}, s2, 15\ns_add_u32 s{S_BG}, s{S_BG}, {O1}")
            p.wait_vm(mW)
            for i in range(8): p(f"v_lshlrev_b32 v{W+i}, 16, v{D+i}\nv_and_b32 v{W+8+i}, 0xffff0000, v{D+i}")
            for i in range(8):
                p.bg.append(f"buffer_store_dwordx4 {vr(M1,4)}, v{s.vt16}, {srd(SW)}, s{S_BG} offen sc1\ns_add_u32 s{S_BG}, s{S_BG}, 4096")
            p.bg.append(f"""s_lshl_b32 s{S_BG}, s2, 7
            s_add_u32 s{S_BG}, s{S_BG}, {ST2}
            s_mov_b64 exec, 0xff
            buffer_store_dwordx4 {vr(M1,4)}, v{s.vl16}, {srd(SW)}, s{S_BG} offen sc1
            s_mov_b64 exec, -1
            s_lshl_b32 s{S_BG}, s{S_HG}, 2
            s_add_u32 s{S_BG}, s{S_BG}, s{S_W}
            s_mul_i32 s{S_BG}, s{S_BG}, 49152
            s_add_u32 s{S_BG}, s{S_BG}, {WQ}""")
            for i in range(48):
                g = f"buffer_load_dwordx4 {ar(A_WQ+4*i,4)}, v{s.vl16}, {srd(SW)}, s{S_BG} offen offset:{1024*(i%4)} sc1"
                if i % 4 == 3: g += f"\ns_add_u32 s{S_BG}, s{S_BG}, 4096"
                p.bg.append(g)
            p.bg_every = s.opt.get("bg2", 40); nbg0 = p.nvm
        for i in range(8): p(f"v_rsq_f32 v{R+i}, v{R+i}")
        Z = ST + 16
        for q in range(0, 8, 2):
            p(f"v_pk_mul_f32 {vr(Z+q,2)}, {vr(C+q,2)}, {vr(R+q,2)}")
        for q in range(0, 8, 2):
            p(f"v_pk_mul_f32 {vr(Z+8+q,2)}, {vr(C+8+q,2)}, {vr(R+q,2)} neg_lo:[1,0] neg_hi:[1,0]")
        for q in range(4): p(f"v_cvt_pk_bf16_f32 v{PK+q}, v{Z+2*q}, v{Z+2*q+1}")
        p(f"ds_write_b128 v{a_w}, {vr(PK,4)}")
        for q in range(4): p(f"v_cvt_pk_bf16_f32 v{PK+4+q}, v{Z+8+2*q}, v{Z+8+2*q+1}")
        for q in range(4): p(f"v_and_b32 v{PK+4+q}, s{S_CMASK}, v{PK+4+q}")
        p(f"ds_write_b128 v{a_w}, {vr(PK+4,4)} offset:4096")
        if layer == 0:
            for i in range(16): p(f"v_accvgpr_write_b32 a{A_W+i}, v{W+i}")
        p("s_waitcnt lgkmcnt(0)\ns_barrier")
        A = ST
        for ks in range(4):
            for t in range(2):
                comp, u = divmod(ks, 2)
                for ph in range(2):
                    p(f"ds_read_b64_tr_b16 {vr(A+16*t+4*ks+2*ph,2)}, v{a_t0 if (t^ph)==0 else a_t1} offset:{comp*4096+u*2048+ph*256}")
        def big(dre, dim, cre, cim, data_first, waits):
            for ks in range(4):
                comp, u = divmod(ks, 2)
                if waits: p(f"s_waitcnt lgkmcnt({waits(ks)})")
                bre = ar(A_F1+8*comp+4*u, 4)
                bim = vr(NS+4*u, 4) if comp == 0 else ar(A_F1+4*u, 4)
                for t in range(2):
                    fr = vr(A+16*t+4*ks, 4)
                    for (dd, cc, bb) in ((dre, cre, bre), (dim, cim, bim)):
                        cin = (vr(cc+4*t,4) if cc is not None else "0") if ks == 0 else vr(dd+4*t,4)
                        p(f"v_mfma_f32_16x16x32_bf16 {vr(dd+4*t,4)}, {fr}, {bb}, {cin}")
        big(D, D+8, None, None, True, lambda ks: 12-4*ks)
        def pack():
            for t in range(2):
                for q in range(2): p(f"v_cvt_pk_bf16_f32 v{PK+4*t+q}, v{D+4*t+2*q}, v{D+4*t+2*q+1}")
                for q in range(2): p(f"v_cvt_pk_bf16_f32 v{PK+4*t+2+q}, v{D+8+4*t+2*q}, v{D+8+4*t+2*q+1}")
        def small(data_is_A):
            for t2 in range(2):
                for t in range(2):
                    for (dd, off) in ((D, 2), (D+8, 0)):
                        cst = vr(FW+6*(2*t+t2)+off, 4); dat = vr(PK+4*t2, 4)
                        a_, b_ = (dat, cst) if data_is_A else (cst, dat)
                        p(f"v_mfma_f32_16x16x32_bf16 {vr(dd+4*t,4)}, {a_}, {b_}, {'0' if t2 == 0 else vr(dd+4*t,4)}")
        s.cmul(D, D+8, TW, TW+8, T); pack(); small(False)
        for i in range(16): p(f"v_accvgpr_read_b32 v{TW+i}, a{A_TW3+i}")
        s.cmul(D, D+8, W, W+8, T, conj=True); pack(); small(True)
        s.cmul(D, D+8, TW, TW+8, T)
        for t in range(2):
            for comp in range(2):
                for q in range(2): p(f"v_cvt_pk_bf16_f32 v{PK+4*t+2*comp+q}, v{D+8*comp+4*t+2*q}, v{D+8*comp+4*t+2*q+1}")
                p(f"ds_write_b64 v{a_xw}, {vr(PK+4*t+2*comp,2)} offset:{comp*4608+t*2304}")
        p(f"""
        s_lshl_b32 s{S_T2}, s2, 13
        s_add_u32 s{S_T4}, s{S_T2}, {XOUT}
        s_add_u32 s{S_T5}, s{S_T4}, 4096
        s_cmp_eq_u32 s2, 0
        s_cselect_b32 s{S_T2}, s{S_T5}, s{S_T4}
        s_cselect_b32 s{S_T3}, s{S_T4}, s{S_T5}
        s_waitcnt lgkmcnt(0)
        s_barrier
        """)
        for ks in range(4):
            comp, u = divmod(ks, 2)
            for t in range(2):
                p(f"ds_read_b128 {vr(A+16*t+4*ks,4)}, v{a_xr} offset:{comp*4608+t*576+64*u}")
        big(C, C+8, C, C+8, True, lambda ks: 6-2*ks)
        if layer == 0:
            p.bg_flush()
            p.wait_vm(nbg0 + 9)
            V.free(M1, 4)
        for q in range(4): p(f"v_cvt_pk_bf16_f32 v{PK+q}, v{C+2*q}, v{C+2*q+1}")
        p(f"v_min_u32 v{PK}, -2, v{PK}")
        p(f"buffer_store_dwordx4 {vr(PK,4)}, v{a_st}, {srd(SW)}, s{S_T2} offen sc1")
        for q in range(4): p(f"v_cvt_pk_bf16_f32 v{PK+4+q}, -v{C+8+2*q}, -v{C+8+2*q+1}")
        for q in range(4): p(f"v_bfi_b32 v{PK+4+q}, s{S_CMASK}, v{PK+4+q}, v{RAW+4+q}")
        p(f"v_min_u32 v{PK+4}, -2, v{PK+4}")
        p(f"buffer_store_dwordx4 {vr(PK+4,4)}, v{a_st}, {srd(SW)}, s{S_T3} offen sc1")
        s.stamp()
        for r, n in ((RAW,8),(ST,32),(C,16),(R,8),(TW,16),(W,16),(FW,24),(NS,8),(D,16),(PK,8),(T,4),(a_in,1),(a_st,1),(a_w,1),(a_t0,1),(a_t1,1),(a_xw,1),(a_xr,1)):
            V.free(r, n)

    def xt_tr_bases(s, dst, tmp):
        p = s.p
        p(f"""
        v_lshrrev_b32 v{tmp}, 2, v2                 ; r
        v_lshl_add_u32 v{tmp+1}, v3, 3, v{tmp}      ; 8g + r
        v_lshlrev_b32 v{dst}, 7, v{tmp+1}
        v_lshrrev_b32 v{tmp}, 1, v{tmp}
        v_and_b32 v{tmp+1}, 1, v3
        v_lshl_or_b32 v{tmp}, v{tmp+1}, 1, v{tmp}   ; f
        v_lshl_add_u32 v{dst}, v{tmp}, 5, v{dst}
        v_and_b32 v{tmp}, 3, v0
        v_lshl_add_u32 v{dst}, v{tmp}, 3, v{dst}
        """)
        for rt in range(1, 4): p(f"v_xor_b32 v{dst+rt}, {32*rt}, v{dst}")

    def preset_VF(s):
        p, V = s.p, s.V
        t = V.alloc(1)
        p(f"""
        v_and_b32 v{t}, 16, v0
        v_cmp_ne_u32 vcc, 0, v{t}
        v_mov_b32 v{t}, 0x3f803f80
        v_cndmask_b32 v{t}, 0, v{t}, vcc
        """)
        for pr in range(5):
            if pr < 4:
                p(f"s_cmp_ge_u32 s{S_RB}, {4-pr}\ns_cselect_b32 s{S_T0}, -1, 0")
                for i in range(16): p(f"v_and_b32 v{s.VF+16*pr+i}, s{S_T0}, v{t}")
            else:
                for i in range(16): p(f"v_mov_b32 v{s.VF+16*pr+i}, v{t}")
        V.free(t)

    def P3(s, layer):
        p, V = s.p, s.V
        XIN, KVB = (XH1, KV1) if layer == 0 else (XH3, KV2)
        LD = V.alloc(64, 4); FB = V.alloc(32, 4); SF = V.alloc(8, 4); ACC = V.alloc(48, 4)
        a_g = V.alloc(1); a_l = V.alloc(4); a_tr = V.alloc(4); a_s = V.alloc(1); SQ = V.alloc(2); T = V.alloc(2); dcm = V.alloc(1)
        S_P = [S_T0, S_T1, S_T2, S_T3]
        p(f"""
        v_lshrrev_b32 v{T}, 3, v1
        v_lshlrev_b32 v{a_g}, 12, v{T}
        v_and_b32 v{T+1}, 7, v1
        v_lshl_add_u32 v{a_g}, v{T+1}, 4, v{a_g}
        v_lshlrev_b32 v{a_l}, 7, v{T}
        v_lshrrev_b32 v{T+1}, 1, v{T+1}
        v_bfe_u32 v{T}, v1, 4, 1
        v_xor_b32 v{T}, v{T}, v{T+1}
        v_lshl_add_u32 v{a_l}, v{T}, 5, v{a_l}
        v_and_b32 v{T}, 1, v1
        v_lshl_add_u32 v{a_l}, v{T}, 4, v{a_l}
        s_lshl_b32 s{S_T5}, s{S_HG}, 2
        s_add_u32 s{S_T5}, s{S_T5}, s{S_W}
        s_and_b32 s{S_T4}, s{S_W}, 1
        s_lshl_b32 s{S_T4}, s{S_T4}, 6
        v_xor_b32 v{a_l}, s{S_T4}, v{a_l}
        s_lshl_b32 s{S_T4}, s{S_RB}, 7
        s_add_u32 s{S_T4}, s{S_T4}, {XIN}
        """)
        for lam in (3, 2, 1, 0):
            p(f"""
            s_add_u32 s{S_P[lam]}, s{S_T5}, {4*lam}
            s_and_b32 s{S_P[lam]}, s{S_P[lam]}, 15
            s_lshl_b32 s{S_P[lam]}, s{S_P[lam]}, 10
            v_add_u32 v{a_l+lam}, s{S_P[lam]}, v{a_l}
            s_lshl_b32 s{S_P[lam]}, s{S_P[lam]}, 5
            s_add_u32 s{S_P[lam]}, s{S_P[lam]}, s{S_T4}
            """)
        s.xt_tr_bases(a_tr, T)
        p(f"""
        s_lshl_b32 s{S_T5}, s{S_W}, 5
        v_xor_b32 v{a_s}, s{S_T5}, v{a_tr}
        v_cmp_gt_u32 vcc, 16, v1
        v_mov_b32 v{dcm}, 0xffff0000
        v_cndmask_b32 v{dcm}, -1, v{dcm}, vcc
        v_mov_b32 v{SQ}, 0
        v_mov_b32 v{SQ+1}, 0
        """)
        p.bg_flush()
        def loads(k):
            for lam in range(4):
                p(f"s_add_u32 s{S_T5}, s{S_P[lam]}, {k*524288}")
                p(f"buffer_load_dwordx4 {vr(LD+16*k+4*lam,4)}, v{a_g}, {srd(SW)}, s{S_T5} offen sc1")
        p("s_waitcnt vmcnt(0)")
        s.stamp()
        m0 = p.mark()
        for k in range(4): loads(k)
        def Wr(k):
            p.wait_vm(m0 + 4*(k+1))
            s.validate([LD+16*k+4*lam for lam in range(4)], lambda: loads(k), T)
            for lam in range(4):
                p(f"ds_write_b128 v{a_l+lam}, {vr(LD+16*k+4*lam,4)} offset:{k*16384}")
        def reads(b):
            L = []
            for rt in range(4):
                for ph in range(2):
                    L.append(f"ds_read_b64_tr_b16 {vr(FB+16*(b%2)+4*rt+2*ph,2)}, v{a_tr+rt} offset:{b*4096+ph*512}")
            for ph in range(2):
                L.append(f"ds_read_b64_tr_b16 {vr(SF+4*(b%2)+2*ph,2)}, v{a_s} offset:{b*4096+ph*512}")
            return L
        Wr(0)
        p("s_waitcnt lgkmcnt(0)\ns_barrier")
        s.stamp()
        for l in reads(0): p(l)
        for b in range(16):
            if b % 4 == 2 and b < 12: Wr(b//4 + 1)
            p("s_waitcnt lgkmcnt(0)")
            if b % 4 == 3 and b < 12: p("s_barrier")
            fill = reads(b+1) if b < 15 else []
            sf = SF + 4*(b%2)
            if b == 0: fill = [f"v_and_b32 v{sf}, v{dcm}, v{sf}"] + fill
            dots = [f"v_dot2_f32_bf16 v{SQ+q%2}, v{sf+q}, v{sf+q}, v{SQ+q%2}" for q in range(4)]
            fill = (dots + fill) if b == 15 else (fill + dots)
            mf = []
            for rt in range(4):
                fr = vr(FB+16*(b%2)+4*rt, 4)
                for part in range(3):
                    acc = vr(ACC+16*part+4*rt, 4); wt = ar(A_WQ+4*(16*part+b), 4)
                    a_, b_ = (wt, fr) if part < 2 else (fr, wt)
                    mf.append(f"v_mfma_f32_16x16x32_bf16 {acc}, {a_}, {b_}, {'0' if b == 0 else acc}")
            if b == 15:
                fill += [f"v_add_f32 v{SQ}, v{SQ}, v{SQ+1}", f"v_mov_b32 v{SQ+1}, v{SQ}", "s_nop 0", f"v_permlane16_swap_b32 v{SQ}, v{SQ+1}",
                         f"v_add_f32 v{SQ}, v{SQ}, v{SQ+1}", f"v_mov_b32 v{SQ+1}, v{SQ}", "s_nop 0", f"v_permlane32_swap_b32 v{SQ}, v{SQ+1}",
                         f"v_add_f32 v{SQ}, v{SQ}, v{SQ+1}"]
            for i, m in enumerate(mf):
                p(m)
                nf = (len(fill) + (len(mf)-i) - 1)//(len(mf)-i)
                for _ in range(nf): p(fill.pop(0))
        RQ = FB; RV = FB + 4
        p(f"""
        v_mov_b32 v{T}, {f32hex(1e-5)}
        v_fmac_f32 v{T}, {f32hex(1/512)}, v{SQ}
        v_rsq_f32 v{T}, v{T}
        s_lshl_b32 s{S_T5}, s{S_W}, 6
        s_add_u32 s{S_T5}, s{S_T5}, {L_RS}
        v_lshl_add_u32 v{T+1}, v2, 2, s{S_T5}
        ds_write_b32 v{T+1}, v{T}
        v_lshlrev_b32 v{T}, 2, v2
        v_add_u32 v{T}, {L_RS}, v{T}
        v_lshlrev_b32 v{T+1}, 4, v3
        v_add_u32 v{T+1}, {L_RS}, v{T+1}
        s_waitcnt lgkmcnt(0)
        s_barrier
        """)
        for rt in range(4): p(f"ds_read_b32 v{RQ+rt}, v{T} offset:{64*rt}")
        for rt in range(4): p(f"ds_read_b128 {vr(RV+4*rt,4)}, v{T+1} offset:{64*rt}")
        V.free(LD, 64)
        s.KF = V.alloc(40, 4); s.QF = V.alloc(8, 4); VG = V.alloc(8, 4)
        s.mksrd(SA, S_WS, KVB, 0x400000)
        p(f"""
        s_lshl_b32 s{S_T0}, s{S_HG}, 2
        s_add_u32 s{S_T0}, s{S_T0}, s{S_W}
        s_lshl_b32 s{S_T0}, s{S_T0}, 5
        s_add_u32 s{S_T0}, s{S_T0}, s{S_RB}
        s_lshl_b32 s{S_KV}, s{S_T0}, 12
        s_lshl_b32 s{S_T1}, s{S_W}, 11
        s_add_u32 s{S_T1}, s{S_T1}, {L_VO}
        v_add_u32 v{a_g}, s{S_T1}, v{s.vl16}
        v_lshrrev_b32 v{a_s}, 5, v1
        v_lshlrev_b32 v{a_s}, 8, v{a_s}
        v_lshl_add_u32 v{a_s}, v2, 4, v{a_s}
        v_add_u32 v{a_s}, s{S_T1}, v{a_s}
        s_waitcnt lgkmcnt(4)
        """)
        def qk(part, dst, tp):
            for z in range(2):
                rt = 2*tp + z; a = ACC + 16*part + 4*rt
                for i in range(4): p(f"v_mul_f32 v{a+i}, v{RQ+rt}, v{a+i}")
                for q in range(2): p(f"v_cvt_pk_bf16_f32 v{dst+2*z+q}, v{a+2*q}, v{a+2*q+1}")
            p(f"v_permlane16_swap_b32 v{dst}, v{dst+2}\nv_permlane16_swap_b32 v{dst+1}, v{dst+3}")
        for tp in range(2):
            kf = s.KF + 32 + 4*tp
            qk(1, kf, tp)
            p(f"v_min_u32 v{kf}, -2, v{kf}")
            p(f"buffer_store_dwordx4 {vr(kf,4)}, v{s.vl16}, {srd(SA)}, s{S_KV} offen offset:{2048*tp} sc1")
        p("s_waitcnt lgkmcnt(0)")
        for tp in range(2):
            for z in range(2):
                rt = 2*tp + z; a = ACC + 32 + 4*rt
                for q in range(2): p(f"v_pk_mul_f32 {vr(a+2*q,2)}, {vr(a+2*q,2)}, {vr(RV+4*rt+2*q,2)}")
                for q in range(2): p(f"v_cvt_pk_bf16_f32 v{VG+4*tp+2*z+q}, v{a+2*q}, v{a+2*q+1}")
            p(f"v_min_u32 v{VG+4*tp}, -2, v{VG+4*tp}")
            p(f"buffer_store_dwordx4 {vr(VG+4*tp,4)}, v{s.vl16}, {srd(SA)}, s{S_KV} offen offset:{2048*tp+1024} sc1")
            p(f"ds_write_b128 v{a_g}, {vr(VG+4*tp,4)} offset:{1024*tp}")
        for tp in range(2): qk(0, s.QF + 4*tp, tp)
        p(f"""
        s_mov_b32 s{S_EX}, 0x0000ffff
        s_mov_b32 s{S_EX+1}, 0x0000ffff
        s_waitcnt lgkmcnt(0)
        s_mov_b64 exec, s[{S_EX}:{S_EX+1}]
        """)
        for tp in range(2):
            for e in range(2):
                p(f"ds_read_b128 {vr(s.VF+8*(8+tp)+4*e,4)}, v{a_s} offset:{1024*tp+512*e}")
        p("s_mov_b64 exec, -1")
        s.stamp()
        for r, n in ((FB,32),(SF,8),(ACC,48),(a_g,1),(a_l,4),(a_tr,4),(a_s,1),(SQ,2),(T,2),(dcm,1),(VG,8)): V.free(r, n)

    def P4(s, layer):
        p, V = s.p, s.V
        OB = O1 if layer == 0 else O2
        KF, VF, QF = s.KF, s.VF, s.QF
        SB_ = V.alloc(32, 4); PB = V.alloc(16, 4); O = V.alloc(32, 4); MK = V.alloc(16, 4)
        aK = V.alloc(4); aV = V.alloc(4); T = V.alloc(2)
        p(f"""
        v_and_b32 v{T}, 31, v1
        v_lshrrev_b32 v{T+1}, 5, v1
        v_lshlrev_b32 v{T+1}, 2, v{T+1}
        v_sub_u32 v{T}, v{T}, v{T+1}               ; q - 4h
        v_mov_b32 v{T+1}, 0xff800000
        """)
        for i in range(16):
            m = (i % 4) + 8*(i//4)
            p(f"v_cmp_gt_i32 vcc, {m}, v{T}\nv_cndmask_b32 v{MK+i}, 0, v{T+1}, vcc")
        units = []
        own = [(1, 8, False), (0, 8, True), (1, 9, True)]
        halo = []
        for pr in (3, 2, 1, 0):
            for t in (2*pr+1, 2*pr):
                for task in (0, 1):
                    if task == 1 and t == 0: continue
                    halo.append((task, t, t == task))
        first = {0: True, 1: True}
        state = {"n": 0, "pend": []}
        def smfma(u, n):
            task, t, mk = u
            return f"v_mfma_f32_32x32x16_bf16 {vr(SB_+16*(n%2),16)}, {vr(KF+4*t,4)}, {vr(QF+4*task,4)}, {vr(MK,16) if mk else '0'}"
        def pv(u, n, e):
            task, t, mk = u
            c = "0" if (first[task] and e == 0) else vr(O+16*task,16)
            first[task] = False
            return f"v_mfma_f32_32x32x16_bf16 {vr(O+16*task,16)}, {vr(VF+8*t+4*e,4)}, {vr(PB+8*(n%2)+4*e,4)}, {c}"
        def run(seq, pre):
            n0 = state["n"]
            if pre.get(0): pre[0]()
            p(smfma(seq[0], n0))
            for i, u in enumerate(seq):
                n = n0 + i; S = SB_ + 16*(n%2); P = PB + 8*(n%2)
                if i+1 < len(seq):
                    if pre.get(i+1): pre[i+1]()
                    nxt = smfma(seq[i+1], n+1)
                else: nxt = None
                for e in range(2):
                    regs = [S+4*e+j for j in range(4)] + [S+8+4*e+j for j in range(4)]
                    for j, r in enumerate(regs):
                        p(f"v_exp_f32 v{r}, v{r}")
                        if j == 1:
                            if state["pend"]: p(state["pend"].pop(0))
                        if j == 4 and e == 0 and nxt: p(nxt)
                    for q in range(4): p(f"v_cvt_pk_bf16_f32 v{P+4*e+q}, v{regs[2*q]}, v{regs[2*q+1]}")
                    state["pend"].append(pv(u, n, e))
            state["n"] = n0 + len(seq)
        p("s_waitcnt lgkmcnt(0)")
        run(own, {})
        while state["pend"]: p(state["pend"].pop(0))
        p(f"""
        v_lshrrev_b32 v{T}, 5, v1
        v_lshlrev_b32 v{T}, 8, v{T}
        v_lshl_add_u32 v{T}, v2, 4, v{T}
        """)
        for pr in range(4):
            p(f"""
            s_sub_u32 s{S_T0}, s{S_KV}, {(4-pr)*4096}
            s_cmp_ge_u32 s{S_RB}, {4-pr}
            s_cselect_b32 s{S_T0}, s{S_T0}, 0x7f000000
            v_add_u32 v{aK+pr}, s{S_T0}, v{s.vl16}
            v_add_u32 v{aV+pr}, s{S_T0}, v{T}
            """)
        p(f"s_mov_b32 s{S_T0}, 0xff800000")
        for i in range(16): p(f"v_xor_b32 v{MK+i}, s{S_T0}, v{MK+i}")
        def hl(pr):
            for z in (1, 0): p(f"buffer_load_dwordx4 {vr(KF+4*(2*pr+z),4)}, v{aK+pr}, {srd(SA)}, 0 offen offset:{2048*z} sc1")
            p(f"s_mov_b64 exec, s[{S_EX}:{S_EX+1}]")
            for z in (1, 0):
                for e in range(2):
                    p(f"buffer_load_dwordx4 {vr(VF+8*(2*pr+z)+4*e,4)}, v{aV+pr}, {srd(SA)}, 0 offen offset:{2048*z+1024+512*e} sc1")
            p("s_mov_b64 exec, -1")
        p("s_waitcnt vmcnt(0)")
        s.stamp()
        marks = {}
        for pr in (3, 2, 1, 0):
            hl(pr); marks[pr] = p.mark()
        if layer == 0:
            M1 = V.alloc(4, 4)
            for i in range(4): p(f"v_mov_b32 v{M1+i}, -1")
            p(f"s_lshl_b32 s{S_BG}, s{S_HG}, 16\ns_lshl_b32 s{S_T0}, s{S_W}, 14\ns_add_u32 s{S_BG}, s{S_BG}, s{S_T0}\ns_add_u32 s{S_BG}, s{S_BG}, {WOP}\ns_add_u32 s{S_BG2}, s{S_T0}, {L_WL}")
            for i in range(16):
                g = ""
                if i % 4 == 0: g += f"s_add_u32 m0, s{S_BG2}, {1024*i}\ns_nop 0\n"
                g += f"buffer_load_dwordx4 v{s.vl16}, {srd(SW)}, s{S_BG} offen offset:{1024*(i%4)} sc1 lds"
                if i % 4 == 3: g += f"\ns_add_u32 s{S_BG}, s{S_BG}, 4096"
                p.bg.append(g)
            p.bg.append(f"s_lshl_b32 s{S_BG}, s2, 15\ns_add_u32 s{S_BG}, s{S_BG}, {CLR2}")
            for i in range(8):
                p.bg.append(f"buffer_store_dwordx4 {vr(M1,4)}, v{s.vt16}, {srd(SW)}, s{S_BG} offen sc1\ns_add_u32 s{S_BG}, s{S_BG}, 4096")
        else:
            aw = V.alloc(1)
            s.mksrd(SIN, S_WO, 0, 524288)
            p(f"""
            v_lshrrev_b32 v{T}, 3, v1
            v_lshlrev_b32 v{aw}, 10, v{T}
            v_lshrrev_b32 v{T}, 1, v{T}
            v_bfe_u32 v{T+1}, v1, 1, 2
            v_xor_b32 v{T}, v{T}, v{T+1}
            v_lshl_add_u32 v{aw}, v{T}, 5, v{aw}
            v_and_b32 v{T}, 1, v1
            v_lshl_add_u32 v{aw}, v{T}, 4, v{aw}
            s_lshl_b32 s{S_BG}, s{S_HG}, 2
            s_add_u32 s{S_BG}, s{S_BG}, s{S_W}
            s_lshl_b32 s{S_BG}, s{S_BG}, 14
            s_add_u32 s{S_BG}, s{S_BG}, {GT}
            s_lshl_b32 s{S_BG2}, s{S_W}, 14
            s_add_u32 s{S_BG2}, s{S_BG2}, {L_WL}
            """)
            for i in range(16):
                g = f"buffer_load_dwordx4 {ar(4*i,4)}, v{s.vl16}, {srd(SW)}, s{S_BG} offen offset:{1024*(i%4)} sc1"
                if i % 4 == 3: g += f"\ns_add_u32 s{S_BG}, s{S_BG}, 4096"
                p.bg.append(g)
            p.bg.append(f"s_lshl_b32 s{S_BG}, s{S_W}, 17\ns_lshl_b32 s{S_BG3}, s{S_HG}, 7\ns_add_u32 s{S_BG}, s{S_BG}, s{S_BG3}")
            for i in range(16):
                p.bg.append(f"s_add_u32 m0, s{S_BG2}, {1024*i}\ns_nop 0\nbuffer_load_dwordx4 v{aw}, {srd(SIN)}, s{S_BG} offen lds\ns_add_u32 s{S_BG}, s{S_BG}, 8192")
        p.bg_every = s.opt.get("bg4", 80); p.bg_acc = 0
        pre = {}
        idx = 0
        for pr in (3, 2, 1, 0):
            def mk(pr=pr):
                old = p._inbg; p._inbg = True
                p.wait_vm(marks[pr])
                s.validate([KF+8*pr, KF+8*pr+4] + [VF+16*pr+4*z for z in range(4)], lambda: hl(pr), T)
                p._inbg = old
            pre[idx] = mk
            idx += 4 if pr > 0 else 3
        run(halo, pre)
        while state["pend"]: p(state["pend"].pop(0))
        p.bg_flush()
        p(f"""
        v_bfe_u32 v{T}, v1, 4, 1
        v_lshlrev_b32 v{aK}, 14, v{T}
        v_lshrrev_b32 v{T}, 5, v1
        v_lshl_add_u32 v{aK}, v{T}, 8, v{aK}
        v_lshl_add_u32 v{aK}, v2, 4, v{aK}
        s_lshl_b32 s{S_T0}, s{S_RB}, 16
        s_lshl_b32 s{S_T1}, s{S_HG}, 11
        s_add_u32 s{S_T0}, s{S_T0}, s{S_T1}
        s_lshl_b32 s{S_T1}, s{S_W}, 9
        s_add_u32 s{S_T0}, s{S_T0}, s{S_T1}
        s_add_u32 s{S_T0}, s{S_T0}, {OB}
        s_add_u32 s{S_T1}, s{S_T0}, 32768
        """)
        for task in range(2):
            o = O + 16*task
            p(f"v_rcp_f32 v{T}, v{o+8}")
            for i in range(8): p(f"v_mul_f32 v{o+i}, v{T}, v{o+i}")
            for q in range(4): p(f"v_cvt_pk_bf16_f32 v{PB+4*task+q}, v{o+2*q}, v{o+2*q+1}")
            p(f"v_min_u32 v{PB+4*task}, -2, v{PB+4*task}")
            p(f"buffer_store_dwordx4 {vr(PB+4*task,4)}, v{aK}, {srd(SW)}, s{S_T0+task} offen sc1")
        s.stamp()
        if layer == 0: V.free(M1, 4)
        else: V.free(aw)
        for r, n in ((SB_,32),(PB,16),(O,32),(MK,16),(aK,4),(aV,4),(T,2),(KF,40),(QF,8)): V.free(r, n)

    def GG(s):
        p, V = s.p, s.V
        FB = V.alloc(32, 4); ACC = V.alloc(16, 4); a_tr = V.alloc(4); T = V.alloc(2)
        s.xt_tr_bases(a_tr, T)
        def reads(b):
            return [f"ds_read_b64_tr_b16 {vr(FB+16*(b%2)+4*rt+2*ph,2)}, v{a_tr+rt} offset:{b*4096+ph*512}" for rt in range(4) for ph in range(2)]
        for l in reads(0): p(l)
        p("s_waitcnt vmcnt(2)")
        for b in range(16):
            fill = reads(b+1) if b < 15 else []
            p("s_waitcnt lgkmcnt(0)")
            for rt in range(4):
                acc = vr(ACC+4*rt, 4)
                p(f"v_mfma_f32_16x16x32_bf16 {acc}, {ar(4*b,4)}, {vr(FB+16*(b%2)+4*rt,4)}, {'0' if b == 0 else acc}")
                for _ in range(2):
                    if fill: p(fill.pop(0))
        p(f"s_lshl_b32 s{S_T0}, s{S_W}, 10\ns_add_u32 s{S_T0}, s{S_T0}, {L_X3}\nv_add_u32 v{T}, s{S_T0}, v{s.vl16}")
        for rt in range(4): p(f"ds_write_b128 v{T}, {vr(ACC+4*rt,4)} offset:{4096*rt}")
        for r, n in ((FB,32),(ACC,16),(a_tr,4),(T,2)): V.free(r, n)

    def P5(s, layer):
        p, V = s.p, s.V
        OB = O1 if layer == 0 else O2
        OF = V.alloc(64, 4); WB = V.alloc(32, 4); ACC = V.alloc(16, 4); a_w = V.alloc(4); T = V.alloc(4); a_o = V.alloc(1); PK = V.alloc(8, 4)
        p(f"""
        v_lshrrev_b32 v{T}, 2, v2                   ; r
        v_and_b32 v{T+1}, 1, v3
        v_lshl_add_u32 v{T+2}, v{T+1}, 2, v{T}      ; 4(g%2) + r
        v_lshrrev_b32 v{T+3}, 1, v3
        v_lshl_add_u32 v{T+3}, v{T+3}, 4, v{T+2}
        v_lshlrev_b32 v{a_w}, 7, v{T+3}
        v_lshrrev_b32 v{T+2}, 1, v{T+2}
        v_lshl_add_u32 v{a_w}, v{T+2}, 5, v{a_w}
        v_and_b32 v{T}, 3, v0
        v_lshl_add_u32 v{a_w}, v{T}, 3, v{a_w}
        v_add_u32 v{a_w}, {L_WL}, v{a_w}
        """)
        for t in range(1, 4): p(f"v_xor_b32 v{a_w+t}, {32*t}, v{a_w}")
        p(f"""
        s_lshl_b32 s{S_T0}, s{S_RB}, 16
        s_lshl_b32 s{S_T1}, s{S_W}, 14
        s_add_u32 s{S_T0}, s{S_T0}, s{S_T1}
        s_add_u32 s{S_T0}, s{S_T0}, {OB}
        s_add_u32 s{S_T1}, s{S_T0}, 4096
        s_add_u32 s{S_T2}, s{S_T0}, 8192
        s_add_u32 s{S_T3}, s{S_T0}, 12288
        """)
        if layer == 0:
            p(f"""
            v_bfe_u32 v{T}, v2, 1, 1
            v_bfe_u32 v{T+1}, v2, 3, 1
            v_lshl_or_b32 v{T}, v{T+1}, 1, v{T}
            v_xor_b32 v{T}, s{S_W}, v{T}
            v_lshlrev_b32 v{T}, 5, v{T}
            v_lshl_add_u32 v{T}, v2, 7, v{T}
            v_lshl_add_u32 v{T}, v3, 3, v{T}
            s_lshl_b32 s{S_T4}, s{S_HG}, 13
            v_add_u32 v{T}, s{S_T4}, v{T}
            """)
            for t in range(4): p(f"ds_read_b64 {vr(PK+2*t,2)}, v{T} offset:{2048*t}")
            p(f"""
            v_lshrrev_b32 v{T}, 1, v2
            v_and_b32 v{T+1}, 1, v3
            v_lshl_add_u32 v{T}, v{T+1}, 3, v{T}
            v_lshlrev_b32 v{a_o}, 13, v{T}
            v_and_b32 v{T}, 1, v2
            v_lshl_add_u32 v{a_o}, v{T}, 5, v{a_o}
            v_lshrrev_b32 v{T}, 1, v3
            v_lshl_add_u32 v{a_o}, v{T}, 4, v{a_o}
            s_waitcnt lgkmcnt(0)
            """)
            for t in range(4):
                for q in range(2):
                    p(f"v_lshlrev_b32 v{ACC+4*t+2*q}, 16, v{PK+2*t+q}\nv_and_b32 v{ACC+4*t+2*q+1}, 0xffff0000, v{PK+2*t+q}")
            p("s_waitcnt vmcnt(0)\ns_barrier")
        else:
            p(f"""
            v_and_b32 v{T}, 1, v3
            v_lshlrev_b32 v{a_o}, 5, v{T}
            v_lshrrev_b32 v{T}, 1, v3
            v_lshl_add_u32 v{a_o}, v{T}, 4, v{a_o}
            v_lshl_add_u32 v{a_o}, v2, 10, v{a_o}
            s_lshl_b32 s{S_T4}, s{S_W}, 12
            s_add_u32 s{S_T4}, s{S_T4}, {L_X3}
            v_add_u32 v{T}, s{S_T4}, v{s.vl16}
            s_waitcnt vmcnt(0) lgkmcnt(0)
            s_barrier
            """)
            for t in range(4): p(f"ds_read_b128 {vr(ACC+4*t,4)}, v{T} offset:{1024*t}")
        s.stamp()
        def loads(k):
            for z in range(4):
                p(f"buffer_load_dwordx4 {vr(OF+16*k+4*z,4)}, v{s.vl16}, {srd(SW)}, s{S_T0+k} offen offset:{1024*z} sc1")
        m0 = p.mark()
        for k in range(4): loads(k)
        def reads(u):
            return [f"ds_read_b64_tr_b16 {vr(WB+16*(u%2)+4*t+2*ph,2)}, v{a_w+t} offset:{u*4096+ph*1024}" for t in range(4) for ph in range(2)]
        for l in reads(0): p(l)
        for u in range(16):
            if u % 4 == 0:
                k = u//4
                p.wait_vm(m0 + 4*(k+1))
                s.validate([OF+16*k+4*z for z in range(4)], lambda k=k: loads(k), T)
            fill = reads(u+1) if u < 15 else []
            p("s_waitcnt lgkmcnt(0)")
            for t in range(4):
                acc = vr(ACC+4*t, 4); o = vr(OF+4*u, 4); w = vr(WB+16*(u%2)+4*t, 4)
                a_, b_ = (o, w) if layer == 0 else (w, o)
                p(f"v_mfma_f32_16x16x32_bf16 {acc}, {a_}, {b_}, {acc}")
                for _ in range(2):
                    if fill: p(fill.pop(0))
        s.stamp()
        if layer == 0:
            p(f"""
            s_lshl_b32 s{S_T0}, s{S_HG}, 18
            s_lshl_b32 s{S_T1}, s{S_RB}, 8
            s_add_u32 s{S_T0}, s{S_T0}, s{S_T1}
            s_lshl_b32 s{S_T1}, s{S_W}, 6
            s_add_u32 s{S_T0}, s{S_T0}, s{S_T1}
            s_add_u32 s{S_T0}, s{S_T0}, {XH2}
            s_add_u32 s{S_T1}, s{S_T0}, 131072
            """)
            sr = srd(SW); fl = " sc1"
        else:
            s.mksrd(SB, S_OUT, 0, 2097152)
            p(f"""
            s_lshl_b32 s{S_T0}, s{S_RB}, 16
            s_lshl_b32 s{S_T1}, s{S_W}, 14
            s_add_u32 s{S_T0}, s{S_T0}, s{S_T1}
            s_lshl_b32 s{S_T1}, s{S_HG}, 7
            s_add_u32 s{S_T0}, s{S_T0}, s{S_T1}
            s_add_u32 s{S_T1}, s{S_T0}, 64
            """)
            sr = srd(SB); fl = ""
        for pi in range(2):
            for z in range(2):
                for q in range(2): p(f"v_cvt_pk_bf16_f32 v{PK+4*pi+2*z+q}, v{ACC+8*pi+4*z+2*q}, v{ACC+8*pi+4*z+2*q+1}")
            p(f"v_permlane16_swap_b32 v{PK+4*pi}, v{PK+4*pi+2}\nv_permlane16_swap_b32 v{PK+4*pi+1}, v{PK+4*pi+3}")
            if layer == 0: p(f"v_min_u32 v{PK+4*pi}, -2, v{PK+4*pi}")
            p(f"buffer_store_dwordx4 {vr(PK+4*pi,4)}, v{a_o}, {sr}, s{S_T0+pi} offen{fl}")
        if layer == 0:
            p(f"s_cmp_eq_u32 s{S_HG}, 0\ns_cselect_b32 s{S_T3}, 1, 0\nv_cmp_gt_u32 vcc, s{S_T3}, v2")
            for i in range(4): p(f"v_cndmask_b32 v{ACC+i}, v{ACC+i}, 0, vcc")
            for i in range(4):
                p(f"v_mul_f32 v{T+i}, v{ACC+i}, v{ACC+i}")
            for t in range(1, 4):
                for i in range(4): p(f"v_fmac_f32 v{T+i}, v{ACC+4*t+i}, v{ACC+4*t+i}")
            for sh in (8,4,2,1):
                for i in range(4): p(f"v_add_f32_dpp v{T+i}, v{T+i}, v{T+i} row_ror:{sh} row_mask:0xf bank_mask:0xf")
            Q = WB
            p(f"""
            v_cvt_pk_bf16_f32 v{Q}, v{T}, v{T+1}
            v_cvt_pk_bf16_f32 v{Q+1}, v{T+2}, v{T+3}
            v_mov_b32 v{Q+2}, v{Q}
            v_mov_b32 v{Q+3}, v{Q+1}
            v_lshrrev_b32 v{T}, 1, v1
            v_permlane16_swap_b32 v{Q}, v{Q+2}
            v_permlane16_swap_b32 v{Q+1}, v{Q+3}
            v_min_u32 v{Q}, -2, v{Q}
            s_lshl_b32 s{S_T0}, s{S_HG}, 12
            s_lshl_b32 s{S_T1}, s{S_RB}, 7
            s_add_u32 s{S_T0}, s{S_T0}, s{S_T1}
            s_lshl_b32 s{S_T1}, s{S_W}, 5
            s_add_u32 s{S_T0}, s{S_T0}, s{S_T1}
            s_add_u32 s{S_T0}, s{S_T0}, {ST2}
            s_mov_b32 s{S_EX}, 1
            s_mov_b32 s{S_EX+1}, 1
            s_mov_b64 exec, s[{S_EX}:{S_EX+1}]
            buffer_store_dwordx4 {vr(Q,4)}, v{T}, {srd(SW)}, s{S_T0} offen sc1
            s_mov_b64 exec, -1
            """)
        s.stamp()
        for r, n in ((OF,64),(WB,32),(ACC,16),(a_w,4),(T,4),(a_o,1),(PK,8)): V.free(r, n)

    def build(s):
        s.body()
        for f in s.slow: f()
        s.p.label("L_end")
        s.p("s_endpgm")
        code = s.p.finalize()
        hdr = open("interleave_layers__spectral_gfnet__sliding_block__prompt.s.ref").read().split("; Override launch")[0]
        out = hdr + f"; @launch grid=(256,1,1) block=(256,1,1) lds={LDS_BYTES}\n"
        out += f'.amdgcn_target "amdgcn-amd-amdhsa--gfx950"\n.text\n.globl {KNAME}\n.p2align 8\n.type {KNAME},@function\n{KNAME}:\n'
        out += code
        out += f""".section .rodata,"a"
.p2align 6
.amdhsa_kernel {KNAME}
  .amdhsa_next_free_vgpr 512
  .amdhsa_next_free_sgpr 102
  .amdhsa_accum_offset 256
  .amdhsa_group_segment_fixed_size 0
  .amdhsa_kernarg_size 72
  .amdhsa_user_sgpr_count 2
  .amdhsa_user_sgpr_kernarg_segment_ptr 1
  .amdhsa_system_sgpr_workgroup_id_x 1
.end_amdhsa_kernel
"""
        return out

    def body(s):
        s.VF = s.V.alloc(80, 4)
        s.prologue()
        s.P1()
        s.gen_F12G()
        s.preset_VF()
        s.stamp()
        if s.stop == "P1":
            s.sync1_poll(); s.stamp(); return s.finish()
        for layer, sfx in ((0, ""), (1, "b")):
            s.P2(layer)
            if s.stop == "P2"+sfx: return s.finish()
            s.P3(layer)
            if s.stop == "P3"+sfx: return s.finish()
            s.P4(layer)
            if s.stop == "P4"+sfx: return s.finish()
            if layer == 1: s.GG()
            s.P5(layer)
            if s.stop == "P5"+sfx: return s.finish()
        s.finish()

if __name__ == "__main__":
    import argparse
    ap = argparse.ArgumentParser()
    ap.add_argument("--stop"); ap.add_argument("--timing", action="store_true"); ap.add_argument("-o", default="k.s")
    a = ap.parse_args()
    g = Gen(stop=a.stop, timing=a.timing)
    txt = g.build()
    open(a.o, "w").write(txt)
    print("bytes", len(txt), "vgpr hi", g.V.hi, "nops", g.p.nops_inserted, "instrs", len(g.p.ins))
```
